```python
import torch

def _softmax(x, axis=-1):
    return torch.softmax(x, dim=axis)
def _gelu(x):
    return torch.nn.functional.gelu(x, approximate="tanh")
def _silu(x):
    return torch.nn.functional.silu(x)
def _sigmoid(x):
    return torch.sigmoid(x)
def _layernorm(x, axis=-1, eps=1e-5):
    m = x.mean(dim=axis, keepdim=True)
    v = x.var(dim=axis, keepdim=True, unbiased=False)
    return (x - m) / torch.sqrt(v + eps)
def _scatter_add(tgt, idx, src, axis=0):
    return tgt.clone().index_add_(axis, idx, src)
def _segment_sum(src, seg, n):
    out = torch.zeros((n,) + src.shape[1:], dtype=src.dtype)
    return out.index_add_(0, seg, src)
def _pad(x, pw):
    flat = tuple(v for pair in reversed(pw) for v in pair)
    return torch.nn.functional.pad(x, flat)

kernel_name = 'recurrent_scan__compressed_kv_cla__dense_activation_silu__decode'

def setup_inputs():

    _w = (lambda a: (lambda t: t.to(torch.bfloat16) if t.is_floating_point() else t)(torch.as_tensor(a)))
    def _A_setup():
        B, H, Sq, Sk, D, M = 2, 32, 1, 4096, 128, 640
        Dc = 4 * D
        return {
            "x": _w((lambda *s: torch.randn(*s, dtype=torch.bfloat16) * 0.1)(B, Sq, M)),
            "c_kv": _w((lambda *s: torch.randn(*s, dtype=torch.bfloat16) * 3.2)(B, Sk, Dc)),
            "w_q": _w((lambda *s: torch.randn(*s, dtype=torch.bfloat16) * 0.8)(M, H, D) * (M ** -0.5)),
            "w_uk": _w((lambda *s: torch.randn(*s, dtype=torch.bfloat16) * 0.8)(Dc, H, D) * (Dc ** -0.5)),
            "w_uv": _w((lambda *s: torch.randn(*s, dtype=torch.bfloat16) * 3.2)(Dc, H, D) * (Dc ** -0.5)),
            "w_o": _w((lambda *s: torch.randn(*s, dtype=torch.bfloat16) * 3.2)(H, D, M) * ((H * D) ** -0.5)),
        }
    _A_in = _A_setup()

    def _B_setup():
        B, S, D, F = 2, 1, 640, 1728
        return {
            "x": _w((lambda *s: torch.randn(*s, dtype=torch.bfloat16) * 0.1)(B, S, D)),
            "w1": _w((lambda *s: torch.randn(*s, dtype=torch.bfloat16) * 3.2)(D, F) * (D ** -0.5)),
            "w2": _w((lambda *s: torch.randn(*s, dtype=torch.bfloat16) * 3.2)(F, D) * (F ** -0.5)),
        }
    _B_in = _B_setup()

    return {
        "A_x": _A_in["x"],
        "A_c_kv": _A_in["c_kv"],
        "A_w_q": _A_in["w_q"],
        "A_w_uk": _A_in["w_uk"],
        "A_w_uv": _A_in["w_uv"],
        "A_w_o": _A_in["w_o"],
        "B_x": _B_in["x"],
        "B_w1": _B_in["w1"],
        "B_w2": _B_in["w2"],
    }

def reference(A_x, A_c_kv, A_w_q, A_w_uk, A_w_uv, A_w_o, B_x, B_w1, B_w2):
    def _A_ref(x, c_kv, w_q, w_uk, w_uv, w_o):
        B, Sq, M = x.shape[0], x.shape[1], x.shape[2]
        Sk = c_kv.shape[1]
        H, D = w_q.shape[1], w_q.shape[2]
        q = torch.einsum("bqm,mhd->bhqd", x, w_q)
        k = torch.einsum("bkc,chd->bhkd", c_kv, w_uk)
        v = torch.einsum("bkc,chd->bhkd", c_kv, w_uv)
        scores = torch.einsum("bhqd,bhkd->bhqk", q, k) * (D ** -0.5)
        off = Sk - Sq
        qi = torch.arange(Sq)[:, None]
        kj = torch.arange(Sk)[None, :]
        cmask = kj <= (qi + off)
        scores = torch.where(cmask[None, None], scores, -1e9)
        p = _softmax(scores, axis=-1)
        ctx = torch.einsum("bhqk,bhkd->bhqd", p, v)
        return torch.einsum("bhqd,hdm->bqm", ctx, w_o)

    def _B_ref(x, w1, w2):
        h = torch.einsum("bsd,df->bsf", x, w1)
        h = _silu(h)
        out = torch.einsum("bsf,fd->bsd", h, w2)
        return out

    x = A_x
    xn = _layernorm(x, axis=-1)
    s = _A_ref(xn, A_c_kv, A_w_q, A_w_uk, A_w_uv, A_w_o)
    g = _silu(_B_ref(xn, B_w1, B_w2))
    return x + s * g
```

```python
import re

class Asm:
    def __init__(self):
        self.lines = []
    def __call__(self, text):
        for ln in text.strip("\n").split("\n"):
            ln = ln.rstrip()
            if ln.strip():
                self.lines.append(ln)
    def label(self, name):
        self.lines.append(name + ":")
    def text(self):
        return "\n".join(self.lines) + "\n"

_reg_re = re.compile(r"^(-|\|)?(abs\()?([vsa])(\d+)\)?\|?$")
_rng_re = re.compile(r"^(-)?([vsa])\[(\d+):(\d+)\]$")

def regs_of(op):
    op = op.strip()
    m = _rng_re.match(op)
    if m:
        return {f"{m.group(2)}{i}" for i in range(int(m.group(3)), int(m.group(4)) + 1)}
    m = _reg_re.match(op)
    if m:
        return {f"{m.group(3)}{m.group(4)}"}
    if op in ("vcc", "vcc_lo", "vcc_hi"):
        return {"vcc"}
    if op in ("exec", "exec_lo", "exec_hi"):
        return {"exec"}
    if op == "m0":
        return {"m0"}
    return set()

TRANS = ("v_exp_f32", "v_log_f32", "v_rcp_f32", "v_rsq_f32", "v_sqrt_f32", "v_sin_f32", "v_cos_f32")

class Ins:
    __slots__ = ("text", "mn", "cls", "dst", "src", "dpp", "srcC", "passes", "lds_dma", "wide_store", "nops", "ab")
    def __init__(self, text):
        self.text = text
        t = text.split(";")[0].strip()
        parts = t.split(None, 1)
        self.mn = parts[0]
        rest = parts[1] if len(parts) > 1 else ""
        ops = [o.strip() for o in rest.split(",")] if rest else []
        mods = ""
        if ops:
            sp = ops[-1].split()
            ops[-1] = sp[0] if sp else ""
            mods = " ".join(sp[1:])
        mn = self.mn
        self.dst, self.src = set(), set()
        self.dpp = ("row_" in t) or ("quad_perm" in t) or ("wave_" in t)
        self.srcC = set(); self.ab = set(); self.passes = 0
        self.lds_dma = False; self.wide_store = False; self.nops = 1
        R = [regs_of(o) for o in ops]
        allsrc = lambda lst: set().union(*lst) if lst else set()
        if mn == "s_nop":
            self.cls = "nop"; self.nops = int(ops[0], 0) + 1
        elif mn.startswith("v_mfma"):
            self.cls = "mfma"; self.dst = R[0]; self.ab = R[1] | R[2]; self.srcC = R[3]; self.src = self.ab | self.srcC
            self.passes = 8 if "32x32" in mn else 4
        elif mn.startswith("v_"):
            self.cls = "valu"
            base = mn
            if mn.startswith("v_cmp"):
                self.dst = R[0]; self.src = allsrc(R[1:])
            elif mn.startswith("v_permlane") and "swap" in mn:
                self.dst = R[0] | R[1]; self.src = R[0] | R[1]
            elif mn.startswith(("v_add_co", "v_sub_co", "v_addc_co", "v_subb_co")):
                self.dst = R[0] | R[1]; self.src = allsrc(R[2:])
            else:
                self.dst = R[0]; self.src = allsrc(R[1:])
                if mn.startswith(("v_fmac", "v_dot2c", "v_pk_fmac", "v_writelane")) or self.dpp:
                    self.src |= R[0]
                if mn.startswith("v_cndmask") and len(ops) == 3:
                    self.src |= {"vcc"}
        elif mn.startswith("ds_"):
            self.cls = "ds"
            if mn.startswith(("ds_read", "ds_bpermute", "ds_permute", "ds_swizzle")):
                self.dst = R[0]; self.src = allsrc(R[1:])
            else:
                self.src = allsrc(R)
        elif mn.startswith(("buffer_", "global_")):
            self.cls = "vmem"
            words = mods.split()
            if mn.startswith("buffer_load") and "lds" in words:
                self.lds_dma = True; self.src = allsrc(R) | {"m0"}
            elif mn.startswith(("buffer_load", "global_load")):
                self.dst = R[0]; self.src = allsrc(R[1:])
            else:
                self.src = allsrc(R)
                if "x4" in mn or "x3" in mn:
                    self.wide_store = True
                    self.ab = R[0] if mn.startswith("buffer_store") else R[1]
        elif mn.startswith("s_"):
            self.cls = "salu"
            if mn.startswith(("s_cmp", "s_cbranch", "s_branch", "s_waitcnt", "s_barrier", "s_endpgm", "s_bitcmp", "s_setprio", "s_sleep")):
                self.src = allsrc(R)
            else:
                self.dst = R[0] if R else set(); self.src = allsrc(R[1:])
                if "saveexec" in mn:
                    self.dst |= {"exec"}; self.src |= {"exec"}
        else:
            self.cls = "other"

def isv(r): return r[0] in "va" and r not in ("vcc",)
def iss(r): return (r[0] == "s") or r in ("vcc", "exec", "m0")

def required(p, c):
    n = 0
    pv = {r for r in p.dst if isv(r)}
    ps = {r for r in p.dst if iss(r)}
    if p.cls == "valu":
        if c.cls == "mfma" and pv & c.src: n = max(n, 2)
        if c.cls == "valu":
            if c.dpp and pv & c.src: n = max(n, 2)
            if c.mn.startswith("v_permlane") and pv & c.src: n = max(n, 2)
            if c.mn.startswith(("v_readlane", "v_readfirstlane")) and pv & c.src: n = max(n, 1)
            if p.mn.startswith(TRANS) and pv & c.src: n = max(n, 1)
            sread = {r for r in c.src if iss(r)}
            if ps & sread:
                n = max(n, 4 if c.mn.startswith(("v_readlane", "v_writelane")) else 2)
            if "exec" in ps: n = max(n, 5 if c.dpp else 2)
        if c.cls == "mfma" and "exec" in ps: n = max(n, 4)
        if c.cls in ("vmem",) and ps & c.src: n = max(n, 5)
        if c.cls == "ds" and ps & c.src: n = max(n, 5)
    if p.cls == "mfma":
        w = {4: 8, 8: 12}[p.passes]
        if c.cls == "mfma":
            if pv & c.ab: n = max(n, w)
            if pv & c.srcC and not (c.srcC == p.dst and c.passes == p.passes): n = max(n, {4: 6, 8: 10}[p.passes])
            if pv & c.dst and not (c.srcC == p.dst and c.dst == p.dst) : n = max(n, w)
        elif c.cls in ("valu", "vmem", "ds"):
            if pv & (c.src | c.dst): n = max(n, w)
        if c.cls in ("valu",) and (p.srcC & c.dst): n = max(n, {4: 3, 8: 7}[p.passes])
        if c.cls in ("vmem", "ds") and (p.srcC & c.dst): n = max(n, {4: 3, 8: 7}[p.passes])
    if p.cls == "salu" and "m0" in p.dst and c.cls == "vmem" and c.lds_dma: n = max(n, 1)
    if p.wide_store and c.cls in ("valu", "mfma") and (p.ab & c.dst): n = max(n, 2)
    if p.wide_store and c.cls in ("vmem", "ds") and (p.ab & c.dst): n = max(n, 1)
    return n

def hazard_pass(text, verbose=False):
    out = []
    hist = []
    inserted = 0
    for ln in text.split("\n"):
        s = ln.split(";")[0].strip()
        if not s or s.endswith(":") or s.startswith("."):
            out.append(ln)
            continue
        c = Ins(ln.strip())
        need = 0
        dist = 0
        for p in reversed(hist):
            r = required(p, c)
            if r > dist:
                need = max(need, r - dist)
            dist += p.nops
            if dist > 24:
                break
        if need:
            out.append(f"  s_nop {need-1}    ; hazard")
            hist.append(Ins(f"s_nop {need-1}"))
            inserted += 1
            if verbose: print("nop", need, "before", ln.strip())
        out.append(ln)
        hist.append(c)
        if len(hist) > 40: hist = hist[-30:]
    return "\n".join(out), inserted
```

```python
import sys, struct
sys.path.insert(0, "gen")
from asmlib import Asm, hazard_pass

NAME = "recurrent_scan__compressed_kv_cla__dense_activation_silu__decode"

def f32(x):
    return "0x%08x" % struct.unpack("<I", struct.pack("<f", x))[0]

WS_EP   = 0x0
WS_CF   = 0x1000
WS_E0   = 0x2000
WS_QA   = 0x30000
WS_E3   = 0x40000
WS_FIN  = 0x60000
WS_E5   = 0xB0000
WS_OIN  = 0x100000
OIN_STRIDE = 16384 + 512
WS_TS   = 0x400000
WS_SIZE = 0x10000000

W_WQ, W_XN, W_XS, W_CL, W_WGT = 0, 40960, 43520, 45824, 46400
W_WUV, W_WO, W_OST = 49152, 81920, 122880
A_CKV, A_Q, A_P, A_M, A_L, A_XN, A_H = 0, 135168, 152064, 156160, 156672, 157184, 159744
A_W1, A_W2 = 0, 20480
CKS = 1056
LDS_BYTES = 163840

P_X, P_CKV, P_WQ, P_WUK, P_WUV, P_WO, P_BX, P_W1, P_W2, P_OUT, P_DBG, P_WS = 4, 6, 8, 10, 12, 14, 16, 18, 20, 22, 24, 26
SRD_X, SRD_A, SRD_B, SRD_C, SRD_D, SRD_WS, SRD_OUT = 28, 32, 36, 40, 44, 48, 52
sW, sH, sJ, sSP, sTAG32, sTAG8, sCNT = 56, 57, 58, 59, 60, 61, 62
sT0, sT1, sT2, sT3, sT4 = 63, 64, 65, 66, 67
sFS, sJJ = 68, 69
sM2, sM32 = 70, 72
sSAVE = 74
sB = 76
sMASKHI = 77
sTS = 80
POLL_LIMIT = 400000

def srd(n): return f"s[{n}:{n+3}]"
def vr(a, n): return f"v[{a}:{a+n-1}]" if n > 1 else f"v{a}"

class Gen:
    def __init__(self, ts=False, nt_w="nt", nt_ckv="nt", stop=None):
        self.a = Asm()
        self.ts_on = ts
        self.nt_w = nt_w
        self.nt_ckv = nt_ckv
        self.stop = stop
        self.uid = 0

    def lab(self, p):
        self.uid += 1
        return f"L_{p}_{self.uid}"

    def ts(self, k):
        if self.ts_on:
            self.a(f"  s_memrealtime s[{sTS+2*k}:{sTS+2*k+1}]\n  s_waitcnt lgkmcnt(0)")

    def ts_flush(self, wave=0):
        if not self.ts_on: return
        a = self.a
        L = self.lab("tsskip")
        a(f"  s_cmp_eq_u32 s{sW}, {wave}\n  s_cbranch_scc0 {L}")
        a(f"  s_lshl_b32 s{sT0}, s2, 6\n  s_add_u32 s{sT0}, s{sT0}, {WS_TS}")
        a("  s_mov_b64 exec, 1\n  v_mov_b32 v1, 0")
        for k in range(10):
            a(f"  v_mov_b32 v2, s{sTS+2*k}\n  buffer_store_dword v2, v1, {srd(SRD_WS)}, s{sT0} offen offset:{4*k}")
        a("  s_waitcnt vmcnt(0)")
        a.label(L)

    def mksrd(self, s, ptr, nbytes):
        self.a(f"  s_mov_b32 s{s}, s{ptr}\n  s_mov_b32 s{s+1}, s{ptr+1}\n  s_mov_b32 s{s+2}, {nbytes}\n  s_mov_b32 s{s+3}, 0x00020000")

    def poll_tail(self, loop):
        d = self.lab("pd")
        self.a(f"  s_add_u32 s{sCNT}, s{sCNT}, 1\n  s_cbranch_vccz {d}\n  s_cmp_lt_u32 s{sCNT}, {POLL_LIMIT}\n  s_cbranch_scc1 {loop}")
        self.a.label(d)

    def tagcheck(self, regs, tmp, vtag):
        a = self.a
        f = lambda x, y, z: ((x ^ z) | (y ^ z)) & 0xff
        t1 = f(0xF0, 0xCC, 0xAA)
        g = lambda x, y, z: (x | (y ^ z)) & 0xff
        t2 = g(0xF0, 0xCC, 0xAA)
        a(f"  v_bitop3_b32 v{tmp}, v{regs[0]}, v{regs[1]}, v{vtag} bitop3:{t1:#x}")
        for r in regs[2:]:
            a(f"  v_bitop3_b32 v{tmp}, v{tmp}, v{r}, v{vtag} bitop3:{t2:#x}")
        a(f"  v_and_b32 v{tmp}, 0xff, v{tmp}\n  v_cmp_ne_u32 vcc, 0, v{tmp}")

    def markcheck(self, regs, tmp):
        a = self.a
        a(f"  v_max3_u32 v{tmp}, v{regs[0]}, v{regs[1]}, v{regs[2]}")
        rest = regs[3:]
        while len(rest) >= 2:
            a(f"  v_max3_u32 v{tmp}, v{tmp}, v{rest[0]}, v{rest[1]}")
            rest = rest[2:]
        if rest:
            a(f"  v_max_u32 v{tmp}, v{tmp}, v{rest[0]}")
        a(f"  v_cmp_eq_u32 vcc, -1, v{tmp}")

    def tagpack(self, regs, vtag):
        for r in regs:
            self.a(f"  v_and_or_b32 v{r}, v{r}, s{sMASKHI}, v{vtag}")

    def red(self, regs, op, tmp, steps):
        a = self.a
        for s in steps:
            if s[0] == "r":
                for r in regs:
                    a(f"  {op}_dpp v{r}, v{r}, v{r} row_ror:{s[1:]} row_mask:0xf bank_mask:0xf")
            else:
                for i, r in enumerate(regs):
                    a(f"  v_mov_b32 v{tmp+i}, v{r}")
                for i, r in enumerate(regs):
                    a(f"  v_permlane{s[1:]}_swap_b32 v{r}, v{tmp+i}")
                for i, r in enumerate(regs):
                    a(f"  {op} v{r}, v{r}, v{tmp+i}")

    def rb(self, dst, src):
        self.a(f"  v_cvt_pk_bf16_f32 v{dst}, v{src}, v{src}\n  v_and_b32 v{dst}, 0xffff0000, v{dst}")

    def ln_load(self, vx):
        a = self.a
        a(f"  s_mul_i32 s{sT0}, s{sW}, 1280\n  v_mul_u32_u24 v{vx+5}, 20, v1\n  v_add_u32 v{vx+5}, s{sT0}, v{vx+5}")
        a(f"  buffer_load_dwordx4 {vr(vx,4)}, v{vx+5}, {srd(SRD_X)}, 0 offen\n  buffer_load_dword v{vx+4}, v{vx+5}, {srd(SRD_X)}, 0 offen offset:16")

    def ln_compute(self, vx, e, xn_base):
        a = self.a
        for k in range(5):
            a(f"  v_lshlrev_b32 v{e+2*k}, 16, v{vx+k}\n  v_and_b32 v{e+2*k+1}, 0xffff0000, v{vx+k}")
        s, t, m, mb = e+10, e+11, e+12, e+13
        a(f"  v_add_f32 v{s}, v{e}, v{e+1}")
        for k in range(2, 10):
            a(f"  v_add_f32 v{s}, v{s}, v{e+k}")
        self.red([s], "v_add_f32", t, ["r1", "r2", "r4", "r8", "p16", "p32"])
        a(f"  v_mul_f32 v{m}, {f32(1/640)}, v{s}")
        a(f"  v_mov_b32 v{s}, 0")
        for k in range(10):
            a(f"  v_sub_f32 v{t}, v{e+k}, v{m}\n  v_fmac_f32 v{s}, v{t}, v{t}")
        self.red([s], "v_add_f32", t, ["r1", "r2", "r4", "r8", "p16", "p32"])
        a(f"  v_mul_f32 v{s}, {f32(1/640)}, v{s}")
        self.rb(s, s)
        a(f"  v_add_f32 v{s}, {f32(1e-5)}, v{s}")
        self.rb(s, s)
        a(f"  v_sqrt_f32 v{s}, v{s}")
        self.rb(s, s)
        a(f"  v_rcp_f32 v{s}, v{s}")
        self.rb(mb, m)
        for k in range(5):
            x0, x1 = e+2*k, e+2*k+1
            a(f"  v_sub_f32 v{x0}, v{x0}, v{mb}\n  v_sub_f32 v{x1}, v{x1}, v{mb}")
            a(f"  v_cvt_pk_bf16_f32 v{t}, v{x0}, v{x1}")
            a(f"  v_lshlrev_b32 v{x0}, 16, v{t}\n  v_and_b32 v{x1}, 0xffff0000, v{t}")
            a(f"  v_mul_f32 v{x0}, v{x0}, v{s}\n  v_mul_f32 v{x1}, v{x1}, v{s}")
            a(f"  v_cvt_pk_bf16_f32 v{vx+k}, v{x0}, v{x1}")
        a(f"  v_add_u32 v{t}, {xn_base}, v{vx+5}")
        for k in range(5):
            a(f"  ds_write_b32 v{t}, v{vx+k} offset:{4*k}")

    def prologue(self):
        a = self.a
        a(f"""
  s_cmp_ge_u32 s2, 256
  s_cbranch_scc1 L_end
  s_load_dwordx16 s[4:19], s[0:1], 0
  s_load_dwordx8 s[20:27], s[0:1], 64
  v_lshrrev_b32 v4, 6, v0
  v_and_b32 v1, 63, v0
  v_readfirstlane_b32 s{sW}, v4
  v_and_b32 v2, 15, v0
  v_lshrrev_b32 v3, 4, v1
  s_mov_b32 s{sCNT}, 0
  s_mov_b32 s{sM2}, 0x00030003
  s_mov_b32 s{sM2+1}, 0x00030003
  s_mov_b32 s{sM32}, -1
  s_mov_b32 s{sM32+1}, 0
  s_mov_b32 s{sMASKHI}, 0xffffff00
""")
        self.ts_pre = True
        a("  s_cmp_lt_u32 s2, 128\n  s_cbranch_scc0 L_roleA")

    def role_w(self):
        a = self.a
        vDMA4, vUK, vTR, vXF, vPUB, vPOLL, vXSW, vXSR, vQAP, vTAG, vT0, vT1 = 4, 5, 6, 7, 8, 9, 10, 11, 12, 13, 14, 15
        fUK, fUV, fO0, fO1 = 16, 32, 48, 64
        T = 80
        a(f"""
  s_and_b32 s{sH}, s2, 7
  s_lshr_b32 s{sT0}, s2, 5
  s_lshl_b32 s{sT0}, s{sT0}, 3
  s_or_b32 s{sH}, s{sH}, s{sT0}
  s_lshr_b32 s{sJ}, s2, 3
  s_and_b32 s{sJ}, s{sJ}, 3
""")
        a(f"""
  s_lshr_b32 s{sT0}, s{sW}, 1
  s_and_b32 s{sT0}, s{sT0}, 1
  s_lshl_b32 s{sT0}, s{sT0}, 2
  v_or_b32 v{vT0}, s{sT0}, v3
  v_lshlrev_b32 v{vT0}, 1, v{vT0}
  v_xor_b32 v{vT0}, v{vT0}, v2
  v_lshlrev_b32 v{vT0}, 4, v{vT0}
  v_lshl_add_u32 v{vDMA4}, v3, 13, v{vT0}
  s_waitcnt lgkmcnt(0)
""")
        self.ts(0)
        self.mksrd(SRD_X, P_X, 2560)
        self.mksrd(SRD_A, P_WQ, 640*8192)
        self.mksrd(SRD_WS, P_WS, WS_SIZE)
        a(f"  s_load_dword s{sTAG32}, s[{P_WS}:{P_WS+1}], {WS_EP}")
        vx = T
        L1 = self.lab("nox")
        a(f"  s_cmp_lt_u32 s{sW}, 2\n  s_cbranch_scc0 {L1}")
        self.ln_load(vx)
        a.label(L1)
        vM1 = T + 8
        a(f"  v_mov_b32 v{vM1}, -1\n  v_mov_b32 v{vM1+1}, -1\n  v_mov_b32 v{vM1+2}, -1\n  v_mov_b32 v{vM1+3}, -1")
        L2 = self.lab("noclean")
        a(f"  s_cmp_eq_u32 s{sW}, 7\n  s_cbranch_scc0 {L2}")
        a(f"""
  s_lshl_b32 s{sT0}, s{sH}, 10
  s_lshl_b32 s{sT1}, s{sJ}, 8
  s_add_u32 s{sT0}, s{sT0}, s{sT1}
  s_add_u32 s{sT0}, s{sT0}, {WS_QA}
  v_lshlrev_b32 v{vT0}, 15, v3
  v_lshl_add_u32 v{vT0}, v2, 4, v{vT0}
  s_mov_b64 exec, s[{sM32}:{sM32+1}]
  buffer_store_dwordx4 {vr(vM1,4)}, v{vT0}, {srd(SRD_WS)}, s{sT0} offen sc1
  s_mov_b64 exec, -1
""")
        a.label(L2)
        a(f"""
  s_mul_i32 s{sT0}, s{sJ}, {160*8192}
  s_lshl_b32 s{sT1}, s{sH}, 8
  s_add_u32 s{sT0}, s{sT0}, s{sT1}
  s_lshl_b32 s{sT1}, s{sW}, 15
  s_add_u32 s{sT0}, s{sT0}, s{sT1}
  s_lshl_b32 s{sT1}, s{sW}, 10
  s_add_u32 s{sT1}, s{sT1}, {W_WQ}
""")
        for k in range(5):
            a(f"  s_mov_b32 m0, s{sT1}")
            a(f"  s_add_u32 s{sT1}, s{sT1}, 8192")
            a(f"  buffer_load_dwordx4 v{vDMA4}, {srd(SRD_A)}, s{sT0} offen {self.nt_w} lds")
            if k < 4: a(f"  s_add_u32 s{sT0}, s{sT0}, {32*8192}")
        self.mksrd(SRD_B, P_WUK, 512*8192)
        a(f"""
  s_lshl_b32 s{sT0}, s{sJ}, 7
  s_lshl_b32 s{sT1}, s{sW}, 4
  s_add_u32 s{sT0}, s{sT0}, s{sT1}
  s_lshl_b32 s{sT0}, s{sT0}, 13
  s_lshl_b32 s{sT1}, s{sH}, 8
  s_add_u32 s{sT0}, s{sT0}, s{sT1}
  v_lshlrev_b32 v{vUK}, 13, v2
  v_lshl_add_u32 v{vUK}, v3, 4, v{vUK}
""")
        for t in range(4):
            a(f"  buffer_load_dwordx4 {vr(fUK+4*t,4)}, v{vUK}, {srd(SRD_B)}, s{sT0} offen offset:{64*t} {self.nt_w}")
        a(f"""
  s_lshl_b32 s{sT0}, s{sH}, 2
  s_add_u32 s{sT0}, s{sT0}, s{sJ}
  s_mul_i32 s{sT4}, s{sT0}, {OIN_STRIDE}
  s_add_u32 s{sT4}, s{sT4}, {WS_OIN}
  s_lshl_b32 s{sT0}, s{sW}, 11
  s_add_u32 s{sT0}, s{sT0}, s{sT4}
  v_lshlrev_b32 v{vT0}, 4, v1
  buffer_store_dwordx4 {vr(vM1,4)}, v{vT0}, {srd(SRD_WS)}, s{sT0} offen sc1
  buffer_store_dwordx4 {vr(vM1,4)}, v{vT0}, {srd(SRD_WS)}, s{sT0} offen offset:1024 sc1
""")
        sOIN = 78
        a(f"  s_mov_b32 s{sOIN}, s{sT4}")
        L3 = self.lab("nostat")
        a(f"  s_cmp_eq_u32 s{sW}, 0\n  s_cbranch_scc0 {L3}")
        a(f"""
  s_add_u32 s{sT0}, s{sOIN}, 16384
  s_mov_b64 exec, s[{sM32}:{sM32+1}]
  buffer_store_dwordx4 {vr(vM1,4)}, v{vT0}, {srd(SRD_WS)}, s{sT0} offen sc1
  s_mov_b64 exec, -1
""")
        a.label(L3)
        a(f"""
  s_waitcnt lgkmcnt(0)
  s_add_u32 s{sTAG32}, s{sTAG32}, 1
  s_and_b32 s{sTAG8}, s{sTAG32}, 0xff
  v_mov_b32 v{vTAG}, s{sTAG8}
""")
        L4 = self.lab("nocf")
        a(f"  s_cmp_eq_u32 s{sW}, 7\n  s_cbranch_scc0 {L4}")
        a(f"""
  s_lshl_b32 s{sT0}, s{sH}, 2
  s_add_u32 s{sT0}, s{sT0}, s{sJ}
  s_lshl_b32 s{sT0}, s{sT0}, 2
  s_add_u32 s{sT0}, s{sT0}, {WS_CF}
  v_mov_b32 v{vT0}, 0
  v_mov_b32 v{vT1}, s{sTAG32}
  s_mov_b64 exec, 1
  s_waitcnt vmcnt(11)
  buffer_store_dword v{vT1}, v{vT0}, {srd(SRD_WS)}, s{sT0} offen sc1
  s_mov_b64 exec, -1
""")
        a.label(L4)
        a(f"""
  v_lshrrev_b32 v{vT0}, 2, v2
  v_and_b32 v{vT1}, 1, v3
  v_lshl_or_b32 v{vT1}, v{vT1}, 2, v{vT0}
  v_lshlrev_b32 v{vT1}, 1, v{vT1}
  v_lshl_add_u32 v{vT0}, v3, 3, v{vT0}
  v_lshlrev_b32 v{vTR}, 8, v{vT0}
  v_bfe_u32 v{vT0}, v2, 1, 1
  s_lshl_b32 s{sT0}, s{sW}, 1
  v_or_b32 v{vT0}, s{sT0}, v{vT0}
  v_xor_b32 v{vT0}, v{vT0}, v{vT1}
  v_lshl_add_u32 v{vTR}, v{vT0}, 4, v{vTR}
  v_and_b32 v{vT0}, 1, v2
  v_lshl_add_u32 v{vTR}, v{vT0}, 3, v{vTR}
""")
        a(f"""
  s_mul_i32 s{sT0}, s{sJ}, 320
  s_add_u32 s{sT0}, s{sT0}, {W_XN}
  v_and_b32 v{vT0}, 1, v2
  v_mul_u32_u24 v{vXF}, 1280, v{vT0}
  v_lshl_add_u32 v{vXF}, v3, 4, v{vXF}
  v_add_u32 v{vXF}, s{sT0}, v{vXF}
""")
        a(f"""
  s_lshl_b32 s{sT0}, s{sH}, 2
  s_add_u32 s{sT0}, s{sT0}, s{sJ}
  s_lshl_b32 s{sT0}, s{sT0}, 10
  s_lshl_b32 s{sT1}, s{sW}, 6
  s_add_u32 s{sT0}, s{sT0}, s{sT1}
  v_and_b32 v{vT0}, 1, v2
  v_lshlrev_b32 v{vPUB}, 9, v{vT0}
  v_lshl_add_u32 v{vPUB}, v3, 4, v{vPUB}
  v_add_u32 v{vPUB}, s{sT0}, v{vPUB}
""")
        a(f"""
  s_lshl_b32 s{sT0}, s{sH}, 3
  s_add_u32 s{sT0}, s{sT0}, s{sW}
  s_lshl_b32 s{sT0}, s{sT0}, 9
  v_lshlrev_b32 v{vPOLL}, 4, v1
  v_add_u32 v{vPOLL}, s{sT0}, v{vPOLL}
  s_mul_i32 s{sT0}, s{sW}, 288
  s_add_u32 s{sT0}, s{sT0}, {W_XS}
  v_lshlrev_b32 v{vXSW}, 3, v1
  v_add_u32 v{vXSW}, s{sT0}, v{vXSW}
  v_and_b32 v{vT0}, 7, v2
  v_mul_u32_u24 v{vXSR}, 288, v{vT0}
  v_lshl_add_u32 v{vXSR}, v3, 4, v{vXSR}
  v_add_u32 v{vXSR}, {W_XS}, v{vXSR}
""")
        a(f"""
  s_lshl_b32 s{sT0}, s{sH}, 10
  s_lshl_b32 s{sT1}, s{sJ}, 8
  s_add_u32 s{sT0}, s{sT0}, s{sT1}
  s_lshl_b32 s{sT1}, s{sW}, 5
  s_add_u32 s{sT0}, s{sT0}, s{sT1}
  s_add_u32 s{sT0}, s{sT0}, {WS_QA}
  v_and_b32 v{vT0}, 1, v2
  v_lshlrev_b32 v{vQAP}, 15, v{vT0}
  v_lshl_add_u32 v{vQAP}, v3, 3, v{vQAP}
  v_add_u32 v{vQAP}, s{sT0}, v{vQAP}
""")
        L5 = self.lab("noln")
        a(f"  s_cmp_lt_u32 s{sW}, 2\n  s_cbranch_scc0 {L5}")
        a("  s_waitcnt vmcnt(11)")
        self.ln_compute(vx, T + 16, W_XN)
        a.label(L5)
        a("  s_waitcnt vmcnt(6) lgkmcnt(0)\n  s_barrier")
        self.ts(1)
        xf, af, acc = T, T + 20, T + 40
        for s in range(5):
            a(f"  ds_read_b128 {vr(xf+4*s,4)}, v{vXF} offset:{64*s}")
            a(f"  ds_read_b64_tr_b16 {vr(af+4*s,2)}, v{vTR} offset:{W_WQ + 8192*s}")
            a(f"  ds_read_b64_tr_b16 {vr(af+4*s+2,2)}, v{vTR} offset:{W_WQ + 8192*s + 1024}")
        for s in range(5):
            a(f"  s_waitcnt lgkmcnt({12-3*s})")
            c = "0" if s == 0 else vr(acc, 4)
            a(f"  v_mfma_f32_16x16x32_bf16 {vr(acc,4)}, {vr(af+4*s,4)}, {vr(xf+4*s,4)}, {c}")
        sE0, sE3 = sT2, sT3
        a(f"  s_mov_b32 s{sE0}, {WS_E0}")
        self.publish_part(acc, vPUB, vTAG, sE0)
        self.ts(2)
        self.consume_part(vPOLL, vXSW, vTAG, sE0, T)
        self.ts(3)
        xr = T + 8
        for t in range(4):
            a(f"  ds_read_b128 {vr(xr+4*t,4)}, v{vXSR} offset:{64*t}")
        for t in range(4):
            a(f"  s_waitcnt lgkmcnt({3-t})")
            c = "0" if t == 0 else vr(acc, 4)
            a(f"  v_mfma_f32_16x16x32_bf16 {vr(acc,4)}, {vr(fUK+4*t,4)}, {vr(xr+4*t,4)}, {c}")
        self.red([acc, acc+1, acc+2, acc+3], "v_add_f32", T, ["r2", "r4"])
        sc = 128**-0.5 * 1.4426950408889634
        a(f"  s_mov_b32 s{sT0}, {f32(sc)}")
        for r in range(4):
            a(f"  v_mul_f32 v{acc+r}, s{sT0}, v{acc+r}")
        a(f"  v_cvt_pk_bf16_f32 v{acc}, v{acc}, v{acc+1}\n  v_cvt_pk_bf16_f32 v{acc+1}, v{acc+2}, v{acc+3}")
        a(f"  s_mov_b64 exec, s[{sM2}:{sM2+1}]")
        a(f"  buffer_store_dwordx2 {vr(acc,2)}, v{vQAP}, {srd(SRD_WS)}, 0 offen sc1")
        a("  s_mov_b64 exec, -1")
        self.ts(4)
        if self.stop == "p1":
            self.ts_flush(); a("  s_endpgm"); return
        self.mksrd(SRD_C, P_WUV, 512*8192)
        self.mksrd(SRD_D, P_WO, 32*163840)
        a(f"""
  s_lshl_b32 s{sT0}, s{sJ}, 20
  s_lshl_b32 s{sT1}, s{sH}, 8
  s_add_u32 s{sT0}, s{sT0}, s{sT1}
  s_lshl_b32 s{sT1}, s{sW}, 15
  s_add_u32 s{sT0}, s{sT0}, s{sT1}
  s_lshl_b32 s{sT1}, s{sW}, 10
  s_add_u32 s{sT1}, s{sT1}, {W_WUV}
""")
        for k in range(4):
            a(f"  s_mov_b32 m0, s{sT1}")
            a(f"  s_add_u32 s{sT1}, s{sT1}, 8192")
            a(f"  buffer_load_dwordx4 v{vDMA4}, {srd(SRD_C)}, s{sT0} offen {self.nt_w} lds")
            if k < 3: a(f"  s_add_u32 s{sT0}, s{sT0}, {32*8192}")
        a(f"""
  s_mul_i32 s{sT0}, s{sH}, 163840
  s_mul_i32 s{sT1}, s{sW}, {16*1280}
  s_add_u32 s{sT0}, s{sT0}, s{sT1}
  s_mul_i32 s{sT1}, s{sJ}, 320
  s_add_u32 s{sT0}, s{sT0}, s{sT1}
  s_mul_i32 s{sT1}, s{sW}, 5120
  s_add_u32 s{sT1}, s{sT1}, {W_WO}
""")
        self.dma_rows320(SRD_D, sT0, sT1, T, T+1, T+2, self.nt_w)
        vTRV, vTRO, vOL, vOW, vSTL, vOTR, vWGW, vWGR, vCLW, vCLR, vFINP = T+40, T+41, T+42, T+43, T+44, T+45, T+46, T+47, T+48, T+49, T+50
        a(f"  v_add_u32 v{vTRV}, {W_WUV}, v{vTR}")
        a(f"""
  v_lshrrev_b32 v{vT0}, 2, v2
  v_lshl_add_u32 v{vT0}, v3, 3, v{vT0}
  v_mul_u32_u24 v{vTRO}, 320, v{vT0}
  v_and_b32 v{vT0}, 3, v2
  v_lshl_add_u32 v{vTRO}, v{vT0}, 3, v{vTRO}
  s_lshl_b32 s{sT0}, s{sW}, 5
  s_add_u32 s{sT0}, s{sT0}, {W_WO}
  v_add_u32 v{vTRO}, s{sT0}, v{vTRO}
""")
        a(f"""
  s_lshl_b32 s{sT0}, s{sW}, 3
  v_add_u32 v{vT0}, s{sT0}, v3
  v_lshlrev_b32 v{vOL}, 8, v{vT0}
  v_lshl_add_u32 v{vOL}, v2, 4, v{vOL}
  v_mul_u32_u24 v{vOW}, 288, v{vT0}
  v_lshl_add_u32 v{vOW}, v2, 4, v{vOW}
  v_add_u32 v{vOW}, {W_OST}, v{vOW}
  v_lshlrev_b32 v{vSTL}, 3, v1
  v_add_u32 v{vSTL}, 16384, v{vSTL}
""")
        a(f"""
  v_lshrrev_b32 v{vT0}, 2, v2
  v_lshl_add_u32 v{vT0}, v3, 2, v{vT0}
  v_mul_u32_u24 v{vOTR}, 288, v{vT0}
  v_and_b32 v{vT0}, 3, v2
  v_lshl_add_u32 v{vOTR}, v{vT0}, 3, v{vOTR}
  s_lshl_b32 s{sT0}, s{sW}, 5
  s_add_u32 s{sT0}, s{sT0}, {W_OST}
  v_add_u32 v{vOTR}, s{sT0}, v{vOTR}
""")
        a(f"""
  v_lshrrev_b32 v{vT0}, 5, v1
  v_lshlrev_b32 v{vWGW}, 6, v{vT0}
  v_bfe_u32 v{vT0}, v1, 2, 2
  v_lshl_add_u32 v{vWGW}, v{vT0}, 4, v{vWGW}
  v_bfe_u32 v{vT0}, v1, 4, 1
  v_lshl_add_u32 v{vWGW}, v{vT0}, 3, v{vWGW}
  v_and_b32 v{vT0}, 3, v1
  v_lshl_add_u32 v{vWGW}, v{vT0}, 1, v{vWGW}
  s_lshl_b32 s{sT0}, s{sW}, 8
  s_add_u32 s{sT0}, s{sT0}, {W_WGT}
  v_add_u32 v{vWGW}, s{sT0}, v{vWGW}
  v_and_b32 v{vT0}, 1, v2
  v_lshlrev_b32 v{vWGR}, 7, v{vT0}
  v_lshl_add_u32 v{vWGR}, v3, 4, v{vWGR}
  v_add_u32 v{vWGR}, s{sT0}, v{vWGR}
""")
        a(f"""
  v_and_b32 v{vT0}, 1, v2
  v_mul_u32_u24 v{vCLR}, 288, v{vT0}
  v_add_u32 v{vCLR}, {W_CL}, v{vCLR}
  s_lshl_b32 s{sT0}, s{sW}, 5
  v_lshl_add_u32 v{vCLW}, v3, 3, v{vCLR}
  v_add_u32 v{vCLW}, s{sT0}, v{vCLW}
  v_lshl_add_u32 v{vCLR}, v3, 4, v{vCLR}
""")
        a(f"""
  s_mul_i32 s{sT0}, s{sJ}, 10
  s_add_u32 s{sT0}, s{sT0}, s{sW}
  s_lshl_b32 s{sT0}, s{sT0}, 6
  s_add_u32 s{sT0}, s{sT0}, s{sH}
  s_lshl_b32 s{sT0}, s{sT0}, 7
  s_add_u32 s{sT0}, s{sT0}, {WS_FIN}
  v_and_b32 v{vT0}, 1, v2
  v_lshlrev_b32 v{vFINP}, 6, v{vT0}
  v_lshl_add_u32 v{vFINP}, v3, 4, v{vFINP}
  v_add_u32 v{vFINP}, s{sT0}, v{vFINP}
""")
        a("  s_waitcnt vmcnt(0)\n  s_barrier")
        for s in range(4):
            a(f"  ds_read_b64_tr_b16 {vr(fUV+4*s,2)}, v{vTRV} offset:{8192*s}")
            a(f"  ds_read_b64_tr_b16 {vr(fUV+4*s+2,2)}, v{vTRV} offset:{8192*s+1024}")
        for s in range(4):
            a(f"  ds_read_b64_tr_b16 {vr(fO0+4*s,2)}, v{vTRO} offset:{32*s*320}")
            a(f"  ds_read_b64_tr_b16 {vr(fO0+4*s+2,2)}, v{vTRO} offset:{(32*s+4)*320}")
        L6 = self.lab("no2tile")
        a(f"  s_cmp_lt_u32 s{sW}, 2\n  s_cbranch_scc0 {L6}")
        for s in range(4):
            a(f"  ds_read_b64_tr_b16 {vr(fO1+4*s,2)}, v{vTRO} offset:{32*s*320 + 256}")
            a(f"  ds_read_b64_tr_b16 {vr(fO1+4*s+2,2)}, v{vTRO} offset:{(32*s+4)*320 + 256}")
        a.label(L6)
        a("  s_waitcnt lgkmcnt(0)")
        self.ts(5)
        o0, o1, st = T, T+4, T+8
        Lp = self.lab("pollO")
        a.label(Lp)
        a(f"  buffer_load_dwordx2 {vr(st,2)}, v{vSTL}, {srd(SRD_WS)}, s{sOIN} offen sc1")
        a(f"  buffer_load_dwordx4 {vr(o0,4)}, v{vOL}, {srd(SRD_WS)}, s{sOIN} offen sc1")
        a(f"  buffer_load_dwordx4 {vr(o1,4)}, v{vOL}, {srd(SRD_WS)}, s{sOIN} offen offset:1024 sc1")
        a("  s_waitcnt vmcnt(0)")
        self.markcheck([o0+i for i in range(8)] + [st, st+1], T+10)
        self.poll_tail(Lp)
        self.ts(6)
        a(f"  ds_write_b128 v{vOW}, {vr(o0,4)}\n  ds_write_b128 v{vOW}, {vr(o1,4)} offset:{4*288}")
        mx, wv, tmp = T+10, T+11, T+12
        a(f"  v_mov_b32 v{mx}, v{st}")
        self.red([mx], "v_max_f32", tmp, ["r1", "r2", "r4", "r8", "p16"])
        a(f"  v_sub_f32 v{wv}, v{st}, v{mx}\n  v_exp_f32 v{wv}, v{wv}")
        a(f"  v_cvt_pk_bf16_f32 v{tmp}, v{wv}, v{wv}")
        a(f"  v_mov_b32 v{tmp+1}, 0")
        a(f"  v_lshrrev_b32 v{tmp+2}, 5, v1\n  v_lshlrev_b32 v{tmp+2}, 7, v{tmp+2}")
        a(f"  v_add_u32 v{tmp+3}, v{vWGW}, v{tmp+2}")
        a(f"  v_xor_b32 v{tmp+2}, 128, v{tmp+2}\n  v_add_u32 v{tmp+2}, v{vWGW}, v{tmp+2}")
        a(f"  ds_write_b16 v{tmp+3}, v{tmp}\n  ds_write_b16 v{tmp+2}, v{tmp+1}")
        a(f"  v_and_b32 v{wv}, 0xffff0000, v{tmp}\n  v_mul_f32 v{wv}, v{wv}, v{st+1}")
        a("  s_waitcnt lgkmcnt(0)\n  s_barrier")
        ot, wf = T+16, T+24
        for s in range(2):
            a(f"  ds_read_b64_tr_b16 {vr(ot+4*s,2)}, v{vOTR} offset:{32*s*288}")
            a(f"  ds_read_b64_tr_b16 {vr(ot+4*s+2,2)}, v{vOTR} offset:{(32*s+16)*288}")
            a(f"  ds_read_b128 {vr(wf+4*s,4)}, v{vWGR} offset:{64*s}")
        self.red([wv], "v_add_f32", tmp, ["r1", "r2", "r4", "r8", "p16"])
        a(f"  v_rcp_f32 v{wv}, v{wv}")
        a(f"  s_nop 0\n  v_readlane_b32 s{sT0}, v{wv}, 0\n  v_readlane_b32 s{sT1}, v{wv}, 32")
        a(f"  v_and_b32 v{tmp}, 1, v2\n  v_cmp_eq_u32 vcc, 0, v{tmp}")
        a(f"  v_mov_b32 v{tmp}, s{sT1}\n  v_mov_b32 v{tmp+1}, s{sT0}\n  v_cndmask_b32 v{tmp}, v{tmp}, v{tmp+1}, vcc")
        acc2 = T + 32
        a("  s_waitcnt lgkmcnt(3)")
        a(f"  v_mfma_f32_16x16x32_bf16 {vr(acc2,4)}, {vr(ot,4)}, {vr(wf,4)}, 0")
        a("  s_waitcnt lgkmcnt(0)")
        a(f"  v_mfma_f32_16x16x32_bf16 {vr(acc2,4)}, {vr(ot+4,4)}, {vr(wf+4,4)}, {vr(acc2,4)}")
        for r in range(4):
            a(f"  v_mul_f32 v{acc2+r}, v{acc2+r}, v{tmp}")
        a(f"  v_cvt_pk_bf16_f32 v{acc2}, v{acc2}, v{acc2+1}\n  v_cvt_pk_bf16_f32 v{acc2+1}, v{acc2+2}, v{acc2+3}")
        a(f"  ds_write_b64 v{vCLW}, {vr(acc2,2)}")
        a("  s_waitcnt lgkmcnt(0)\n  s_barrier")
        cf = T + 16
        for t in range(4):
            a(f"  ds_read_b128 {vr(cf+4*t,4)}, v{vCLR} offset:{64*t}")
        for t in range(4):
            a(f"  s_waitcnt lgkmcnt({3-t})")
            c = "0" if t == 0 else vr(acc2, 4)
            a(f"  v_mfma_f32_16x16x32_bf16 {vr(acc2,4)}, {vr(fUV+4*t,4)}, {vr(cf+4*t,4)}, {c}")
        a(f"  s_mov_b32 s{sE3}, {WS_E3}")
        self.publish_part(acc2, vPUB, vTAG, sE3)
        self.ts(7)
        self.consume_part(vPOLL, vXSW, vTAG, sE3, T)
        xr = T + 8
        for t in range(4):
            a(f"  ds_read_b128 {vr(xr+4*t,4)}, v{vXSR} offset:{64*t}")
        accB = T + 36
        for t in range(4):
            a(f"  s_waitcnt lgkmcnt({3-t})")
            c = "0" if t == 0 else vr(acc2, 4)
            a(f"  v_mfma_f32_16x16x32_bf16 {vr(acc2,4)}, {vr(fO0+4*t,4)}, {vr(xr+4*t,4)}, {c}")
        L7 = self.lab("no2b")
        a(f"  s_cmp_lt_u32 s{sW}, 2\n  s_cbranch_scc0 {L7}")
        for t in range(4):
            c = "0" if t == 0 else vr(accB, 4)
            a(f"  v_mfma_f32_16x16x32_bf16 {vr(accB,4)}, {vr(fO1+4*t,4)}, {vr(xr+4*t,4)}, {c}")
        self.red([accB+i for i in range(4)], "v_add_f32", T, ["r2", "r4"])
        self.tagpack([accB+i for i in range(4)], vTAG)
        a(f"  s_mov_b32 s{sT0}, {8*64*128}")
        a(f"  s_mov_b64 exec, s[{sM2}:{sM2+1}]")
        a(f"  buffer_store_dwordx4 {vr(accB,4)}, v{vFINP}, {srd(SRD_WS)}, s{sT0} offen sc1")
        a("  s_mov_b64 exec, -1")
        a.label(L7)
        self.red([acc2+i for i in range(4)], "v_add_f32", T, ["r2", "r4"])
        self.tagpack([acc2+i for i in range(4)], vTAG)
        a(f"  s_mov_b64 exec, s[{sM2}:{sM2+1}]")
        a(f"  buffer_store_dwordx4 {vr(acc2,4)}, v{vFINP}, {srd(SRD_WS)}, 0 offen sc1")
        a("  s_mov_b64 exec, -1")
        self.ts(8)
        Lf = self.lab("nofinal")
        a(f"  s_cmp_lt_u32 s{sH}, 10\n  s_cbranch_scc0 {Lf}")
        a(f"  s_cmp_eq_u32 s{sW}, 7\n  s_cbranch_scc0 {Lf}")
        self.final(T, vTAG)
        a.label(Lf)
        self.ts(9)
        self.ts_flush(7)
        a("  s_endpgm")

    def dma_rows320(self, S, sOFF, sLDS, vq, vr_, vo, nt):
        a = self.a
        for k in range(5):
            a(f"  v_add_u32 v{vq}, {64*k}, v1")
            a(f"  v_mul_u32_u24 v{vr_}, 3277, v{vq}\n  v_lshrrev_b32 v{vr_}, 16, v{vr_}")
            a(f"  v_mul_u32_u24 v{vo}, 20, v{vr_}\n  v_sub_u32 v{vq}, v{vq}, v{vo}")
            a(f"  v_mul_u32_u24 v{vo}, 1280, v{vr_}\n  v_lshl_add_u32 v{vo}, v{vq}, 4, v{vo}")
            a(f"  s_mov_b32 m0, s{sLDS}")
            a(f"  s_add_u32 s{sLDS}, s{sLDS}, 1024")
            a(f"  buffer_load_dwordx4 v{vo}, {srd(S)}, s{sOFF} offen {nt} lds")

    def publish_part(self, acc, vPUB, vTAG, sBase):
        a = self.a
        self.tagpack([acc+i for i in range(4)], vTAG)
        a(f"  s_mov_b64 exec, s[{sM2}:{sM2+1}]")
        a(f"  buffer_store_dwordx4 {vr(acc,4)}, v{vPUB}, {srd(SRD_WS)}, s{sBase} offen sc1")
        a("  s_mov_b64 exec, -1")

    def consume_part(self, vPOLL, vXSW, vTAG, sBase, T):
        a = self.a
        Lp = self.lab("pollp")
        a(f"  s_mov_b64 exec, s[{sM32}:{sM32+1}]")
        a.label(Lp)
        a(f"  buffer_load_dwordx4 {vr(T,4)}, v{vPOLL}, {srd(SRD_WS)}, s{sBase} offen sc1")
        a("  s_waitcnt vmcnt(0)")
        self.tagcheck([T, T+1, T+2, T+3], T+4, vTAG)
        self.poll_tail(Lp)
        a(f"  v_cvt_pk_bf16_f32 v{T}, v{T}, v{T+1}\n  v_cvt_pk_bf16_f32 v{T+1}, v{T+2}, v{T+3}")
        a(f"  ds_write_b64 v{vXSW}, {vr(T,2)}")
        a("  s_mov_b64 exec, -1")
        a("  s_waitcnt lgkmcnt(0)\n  s_barrier")

    def silu(self, dst, src, tmp):
        a = self.a
        a(f"  v_mul_f32 v{tmp}, {f32(-1.4426950408889634)}, v{src}\n  v_exp_f32 v{tmp}, v{tmp}")
        a(f"  v_add_f32 v{tmp}, 1.0, v{tmp}\n  v_rcp_f32 v{tmp}, v{tmp}")
        a(f"  v_mul_f32 v{dst}, v{src}, v{tmp}")

    def final(self, T, vTAG):
        a = self.a
        R = T
        vA, vX, vO, tmp = T+32, T+34, T+36, T+40
        a(f"""
  s_mul_i32 s{sT0}, s{sJ}, 10
  s_add_u32 s{sT0}, s{sT0}, s{sH}
  s_lshl_b32 s{sT0}, s{sT0}, 13
  s_add_u32 s{sT0}, s{sT0}, {WS_FIN}
  s_add_u32 s{sT1}, s{sT0}, 4096
  v_lshlrev_b32 v{vA}, 4, v1
""")
        self.mksrd(SRD_X, P_X, 2560)
        self.mksrd(SRD_OUT, P_OUT, 2560)
        a(f"""
  s_mul_i32 s{sT2}, s{sJ}, 320
  s_lshl_b32 s{sT3}, s{sH}, 5
  s_add_u32 s{sT2}, s{sT2}, s{sT3}
  v_bfe_u32 v{vO}, v1, 2, 1
  v_mul_u32_u24 v{vO}, 1280, v{vO}
  v_and_b32 v{tmp}, 3, v1
  v_lshl_add_u32 v{vO}, v{tmp}, 3, v{vO}
  v_add_u32 v{vO}, s{sT2}, v{vO}
  buffer_load_dwordx2 {vr(vX,2)}, v{vO}, {srd(SRD_X)}, 0 offen
""")
        for r in range(4):
            a(f"  v_mov_b32 v{R+28+r}, v{vTAG}")
        a(f"  s_mov_b32 s{sSAVE}, 0x00ffffff\n  s_mov_b32 s{sSAVE+1}, 0")
        Lp = self.lab("pollF")
        a.label(Lp)
        for k in range(4):
            a(f"  buffer_load_dwordx4 {vr(R+4*k,4)}, v{vA}, {srd(SRD_WS)}, s{sT0} offen offset:{1024*k} sc1")
        for k in range(4, 7):
            a(f"  buffer_load_dwordx4 {vr(R+4*k,4)}, v{vA}, {srd(SRD_WS)}, s{sT1} offen offset:{1024*(k-4)} sc1")
        a(f"  s_mov_b64 exec, s[{sSAVE}:{sSAVE+1}]")
        a(f"  buffer_load_dwordx4 {vr(R+28,4)}, v{vA}, {srd(SRD_WS)}, s{sT1} offen offset:3072 sc1")
        a("  s_mov_b64 exec, -1")
        a("  s_waitcnt vmcnt(0)")
        self.tagcheck([R+i for i in range(32)], tmp, vTAG)
        self.poll_tail(Lp)
        S, F = R, R+16
        for r in range(4):
            a(f"  v_add_f32 v{S+r}, v{S+r}, v{S+4+r}\n  v_add_f32 v{S+8+r}, v{S+8+r}, v{S+12+r}")
            a(f"  v_add_f32 v{F+r}, v{F+r}, v{F+4+r}\n  v_add_f32 v{F+8+r}, v{F+8+r}, v{F+12+r}")
        for r in range(4):
            a(f"  v_add_f32 v{S+r}, v{S+r}, v{S+8+r}\n  v_add_f32 v{F+r}, v{F+r}, v{F+8+r}")
        regs = [S+i for i in range(4)] + [F+i for i in range(4)]
        self.red(regs, "v_add_f32", tmp, ["r8", "p16", "p32"])
        for r in range(4):
            self.rb(F+r, F+r)
            self.silu(F+r, F+r, tmp+r)
            self.rb(F+r, F+r)
            self.rb(S+r, S+r)
            a(f"  v_mul_f32 v{S+r}, v{S+r}, v{F+r}")
            self.rb(S+r, S+r)
        a(f"  v_lshlrev_b32 v{tmp}, 16, v{vX}\n  v_and_b32 v{tmp+1}, 0xffff0000, v{vX}")
        a(f"  v_lshlrev_b32 v{tmp+2}, 16, v{vX+1}\n  v_and_b32 v{tmp+3}, 0xffff0000, v{vX+1}")
        for r in range(4):
            a(f"  v_add_f32 v{S+r}, v{S+r}, v{tmp+r}")
        a(f"  v_cvt_pk_bf16_f32 v{S}, v{S}, v{S+1}\n  v_cvt_pk_bf16_f32 v{S+1}, v{S+2}, v{S+3}")
        a(f"  s_mov_b64 exec, 0xff")
        a(f"  buffer_store_dwordx2 {vr(S,2)}, v{vO}, {srd(SRD_OUT)}, 0 offen sc1")
        Le = self.lab("noep")
        a(f"  s_or_b32 s{sT0}, s{sH}, s{sJ}\n  s_cmp_eq_u32 s{sT0}, 0\n  s_cbranch_scc0 {Le}")
        a(f"  s_mov_b64 exec, 1\n  v_mov_b32 v{tmp}, 0\n  v_mov_b32 v{tmp+1}, s{sTAG32}")
        a(f"  buffer_store_dword v{tmp+1}, v{tmp}, {srd(SRD_WS)}, 0 offen offset:{WS_EP} sc1")
        a.label(Le)
        a("  s_mov_b64 exec, -1")

    def role_a(self):
        a = self.a
        a.label("L_roleA")
        sHG = sH; sBB = sJ
        vL16, vQK, vPV0, vPV1, vQR, vTAG, vT0, vT1 = 4, 5, 6, 7, 8, 9, 10, 11
        vQL, vQW, vMW, vMR, vPW, vPR, vOP, vSTP = 12, 13, 14, 15, 16, 17, 18, 19
        T = 24
        fQ = 64
        fK, fV = 128, 192
        a(f"""
  s_sub_u32 s{sT0}, s2, 128
  s_lshr_b32 s{sHG}, s{sT0}, 6
  s_lshr_b32 s{sBB}, s{sT0}, 5
  s_and_b32 s{sBB}, s{sBB}, 1
  s_and_b32 s{sSP}, s{sT0}, 31
  s_lshr_b32 s{sFS}, s{sT0}, 2
  s_and_b32 s{sJJ}, s{sT0}, 3
  v_lshlrev_b32 v{vL16}, 4, v1
  s_waitcnt lgkmcnt(0)
""")
        self.ts(0)
        self.mksrd(SRD_X, P_X, 2560)
        self.mksrd(SRD_A, P_CKV, 2*4096*1024)
        self.mksrd(SRD_WS, P_WS, WS_SIZE)
        a(f"  s_load_dword s{sTAG32}, s[{P_WS}:{P_WS+1}], {WS_EP}")
        vx = T
        L1 = self.lab("nox")
        a(f"  s_cmp_lt_u32 s{sW}, 2\n  s_cbranch_scc0 {L1}")
        self.ln_load(vx)
        a.label(L1)
        a(f"""
  s_lshl_b32 s{sT0}, s{sBB}, 12
  s_lshl_b32 s{sT1}, s{sSP}, 7
  s_add_u32 s{sT0}, s{sT0}, s{sT1}
  s_lshl_b32 s{sT1}, s{sW}, 2
  s_add_u32 s{sT0}, s{sT0}, s{sT1}
  s_lshl_b32 s{sT0}, s{sT0}, 10
  s_mul_i32 s{sT1}, s{sW}, {4*CKS}
""")
        for q in range(4):
            for r in range(4):
                a(f"  s_mov_b32 m0, s{sT1}")
                adv = (CKS, 1024) if r < 3 else (29*CKS, 29*1024)
                a(f"  s_add_u32 s{sT1}, s{sT1}, {adv[0]}")
                a(f"  buffer_load_dwordx4 v{vL16}, {srd(SRD_A)}, s{sT0} offen {self.nt_ckv} lds")
                if not (q == 3 and r == 3): a(f"  s_add_u32 s{sT0}, s{sT0}, {adv[1]}")
        a(f"""
  s_waitcnt lgkmcnt(0)
  s_add_u32 s{sTAG32}, s{sTAG32}, 1
  s_and_b32 s{sTAG8}, s{sTAG32}, 0xff
  v_mov_b32 v{vTAG}, s{sTAG8}
""")
        a(f"""
  s_mul_i32 s{sT0}, s{sW}, {16*CKS}
  v_mul_u32_u24 v{vQR}, {CKS}, v2
  v_lshl_add_u32 v{vQR}, v3, 4, v{vQR}
  v_add_u32 v{vQK}, s{sT0}, v{vQR}
  v_add_u32 v{vQR}, {A_Q}, v{vQR}
""")
        a(f"""
  v_lshrrev_b32 v{vT0}, 2, v2
  v_lshl_add_u32 v{vT0}, v3, 2, v{vT0}
  v_mul_u32_u24 v{vPV0}, {CKS}, v{vT0}
  v_and_b32 v{vT0}, 3, v2
  v_lshl_add_u32 v{vPV0}, v{vT0}, 3, v{vPV0}
  s_lshl_b32 s{sT0}, s{sW}, 7
  v_add_u32 v{vPV0}, s{sT0}, v{vPV0}
  v_add_u32 v{vPV1}, {64*CKS}, v{vPV0}
""")
        a(f"""
  s_lshl_b32 s{sT0}, s{sBB}, 5
  s_lshl_b32 s{sT1}, s{sHG}, 4
  s_add_u32 s{sT0}, s{sT0}, s{sT1}
  s_lshl_b32 s{sT1}, s{sW}, 1
  s_add_u32 s{sT0}, s{sT0}, s{sT1}
  s_lshl_b32 s{sT0}, s{sT0}, 10
  s_add_u32 s{sT0}, s{sT0}, {WS_QA}
  v_add_u32 v{vQL}, s{sT0}, v{vL16}
  s_mul_i32 s{sT0}, s{sW}, {2*CKS}
  s_add_u32 s{sT0}, s{sT0}, {A_Q}
  v_add_u32 v{vQW}, s{sT0}, v{vL16}
""")
        a(f"""
  v_lshlrev_b32 v{vMR}, 5, v2
  v_add_u32 v{vMR}, {A_M}, v{vMR}
  s_lshl_b32 s{sT0}, s{sW}, 2
  v_add_u32 v{vMW}, s{sT0}, v{vMR}
  s_lshr_b32 s{sT0}, s{sW}, 1
  s_lshl_b32 s{sT0}, s{sT0}, 10
  s_and_b32 s{sT1}, s{sW}, 1
  s_lshl_b32 s{sT1}, s{sT1}, 3
  s_add_u32 s{sT0}, s{sT0}, s{sT1}
  v_add_u32 v{vPR}, {A_P}, v{vL16}
  v_add_u32 v{vPW}, s{sT0}, v{vPR}
""")
        a(f"""
  s_lshl_b32 s{sT0}, s{sHG}, 6
  s_lshr_b32 s{sT1}, s{sW}, 1
  s_add_u32 s{sT0}, s{sT0}, s{sT1}
  s_mul_i32 s{sT0}, s{sT0}, {OIN_STRIDE}
  s_lshl_b32 s{sT1}, s{sBB}, 5
  s_add_u32 s{sT1}, s{sT1}, s{sSP}
  s_lshl_b32 s{sT2}, s{sT1}, 8
  s_add_u32 s{sT0}, s{sT0}, s{sT2}
  s_and_b32 s{sT2}, s{sW}, 1
  s_lshl_b32 s{sT2}, s{sT2}, 7
  s_add_u32 s{sT0}, s{sT0}, s{sT2}
  s_add_u32 s{sT0}, s{sT0}, {WS_OIN}
  s_mov_b32 s{sT2}, {4*OIN_STRIDE}
  v_mul_lo_u32 v{vOP}, s{sT2}, v2
  v_and_b32 v{vT0}, 1, v3
  v_lshl_add_u32 v{vOP}, v{vT0}, 5, v{vOP}
  v_lshrrev_b32 v{vT0}, 1, v3
  v_lshl_add_u32 v{vOP}, v{vT0}, 4, v{vOP}
  v_add_u32 v{vOP}, s{sT0}, v{vOP}
""")
        a(f"""
  s_lshl_b32 s{sT0}, s{sHG}, 6
  s_mul_i32 s{sT0}, s{sT0}, {OIN_STRIDE}
  s_lshl_b32 s{sT1}, s{sT1}, 3
  s_add_u32 s{sT0}, s{sT0}, s{sT1}
  s_add_u32 s{sT0}, s{sT0}, {WS_OIN + 16384}
  v_lshl_add_u32 v{vT0}, v2, 2, v3
  s_mov_b32 s{sT2}, {OIN_STRIDE}
  v_mul_lo_u32 v{vSTP}, s{sT2}, v{vT0}
  v_add_u32 v{vSTP}, s{sT0}, v{vSTP}
""")
        L5 = self.lab("noln")
        a(f"  s_cmp_lt_u32 s{sW}, 2\n  s_cbranch_scc0 {L5}")
        a("  s_waitcnt vmcnt(16)")
        self.ln_compute(vx, T + 8, A_XN)
        a.label(L5)
        for q in range(4):
            a(f"  s_waitcnt vmcnt({12-4*q}) lgkmcnt(0)\n  s_barrier")
            if q == 0: self.ts(1)
            base = vPV0 if q < 2 else vPV1
            qq = q & 1
            for ct in range(4):
                for u in range(2):
                    r = fV + (ct*4 + q)*4 + 2*u
                    a(f"  ds_read_b64_tr_b16 {vr(r,2)}, v{base} offset:{(32*qq+16*u)*CKS + 32*ct}")
            Lq = self.lab("noqk")
            a(f"  s_lshr_b32 s{sT0}, s{sW}, 1\n  s_cmp_eq_u32 s{sT0}, {q}\n  s_cbranch_scc0 {Lq}")
            for t in range(16):
                a(f"  ds_read_b128 {vr(fK+4*t,4)}, v{vQK} offset:{64*t}")
            a.label(Lq)
        self.ts(2)
        Lp = self.lab("pollCF")
        a(f"  s_lshl_b32 s{sT0}, s{sHG}, 8\n  s_add_u32 s{sT0}, s{sT0}, {WS_CF}\n  v_lshlrev_b32 v{vT0}, 2, v1")
        a.label(Lp)
        a(f"  buffer_load_dword v{T}, v{vT0}, {srd(SRD_WS)}, s{sT0} offen sc1")
        a("  s_waitcnt vmcnt(0)")
        a(f"  v_cmp_ne_u32 vcc, s{sTAG32}, v{T}")
        self.poll_tail(Lp)
        self.ts(3)
        Lp = self.lab("pollQ")
        a.label(Lp)
        a(f"  buffer_load_dwordx4 {vr(T,4)}, v{vQL}, {srd(SRD_WS)}, 0 offen sc1")
        a(f"  buffer_load_dwordx4 {vr(T+4,4)}, v{vQL}, {srd(SRD_WS)}, 0 offen offset:1024 sc1")
        a("  s_waitcnt vmcnt(0)")
        self.markcheck([T+i for i in range(8)], T+8)
        self.poll_tail(Lp)
        a(f"  ds_write_b128 v{vQW}, {vr(T,4)}\n  ds_write_b128 v{vQW}, {vr(T+4,4)} offset:{CKS}")
        a("  s_waitcnt lgkmcnt(0)\n  s_barrier")
        self.ts(4)
        S = T
        for t in range(16):
            a(f"  ds_read_b128 {vr(fQ+4*t,4)}, v{vQR} offset:{64*t}")
        for t in range(16):
            a(f"  s_waitcnt lgkmcnt({min(15-t, 15)})")
            c = "0" if t == 0 else vr(S, 4)
            a(f"  v_mfma_f32_16x16x32_bf16 {vr(S,4)}, {vr(fK+4*t,4)}, {vr(fQ+4*t,4)}, {c}")
        mx, tmp = T+4, T+5
        a(f"  v_max3_f32 v{mx}, v{S}, v{S+1}, v{S+2}\n  v_max_f32 v{mx}, v{mx}, v{S+3}")
        self.red([mx], "v_max_f32", tmp, ["p16", "p32"])
        a(f"  ds_write_b32 v{vMW}, v{mx}")
        a("  s_waitcnt lgkmcnt(0)\n  s_barrier")
        m8 = T + 8
        a(f"  ds_read_b128 {vr(m8,4)}, v{vMR}\n  ds_read_b128 {vr(m8+4,4)}, v{vMR} offset:16")
        a("  s_waitcnt lgkmcnt(0)")
        a(f"  v_max3_f32 v{mx}, v{m8}, v{m8+1}, v{m8+2}\n  v_max3_f32 v{mx}, v{mx}, v{m8+3}, v{m8+4}")
        a(f"  v_max3_f32 v{mx}, v{mx}, v{m8+5}, v{m8+6}\n  v_max_f32 v{mx}, v{mx}, v{m8+7}")
        for r in range(4):
            a(f"  v_sub_f32 v{S+r}, v{S+r}, v{mx}")
        for r in range(4):
            a(f"  v_exp_f32 v{S+r}, v{S+r}")
        pk = T + 6
        a(f"  v_cvt_pk_bf16_f32 v{pk}, v{S}, v{S+1}\n  v_cvt_pk_bf16_f32 v{pk+1}, v{S+2}, v{S+3}")
        a(f"  ds_write_b64 v{vPW}, {vr(pk,2)}")
        ls = T + 16
        a(f"  v_lshlrev_b32 v{S}, 16, v{pk}\n  v_and_b32 v{S+1}, 0xffff0000, v{pk}")
        a(f"  v_lshlrev_b32 v{S+2}, 16, v{pk+1}\n  v_and_b32 v{S+3}, 0xffff0000, v{pk+1}")
        a(f"  v_add_f32 v{ls}, v{S}, v{S+1}\n  v_add_f32 v{S+2}, v{S+2}, v{S+3}\n  v_add_f32 v{ls}, v{ls}, v{S+2}")
        self.red([ls], "v_add_f32", tmp, ["p16", "p32"])
        a(f"  ds_write_b32 v{vMW}, v{ls} offset:{A_L - A_M}")
        a("  s_waitcnt lgkmcnt(0)\n  s_barrier")
        self.ts(5)
        pf = fQ
        for s in range(4):
            a(f"  ds_read_b128 {vr(pf+4*s,4)}, v{vPR} offset:{1024*s}")
        l8 = T + 8
        a(f"  ds_read_b128 {vr(l8,4)}, v{vMR} offset:{A_L - A_M}\n  ds_read_b128 {vr(l8+4,4)}, v{vMR} offset:{A_L - A_M + 16}")
        acc = fQ + 16
        for s in range(4):
            a(f"  s_waitcnt lgkmcnt({5-s})")
            for ct in range(4):
                c = "0" if s == 0 else vr(acc+4*ct, 4)
                a(f"  v_mfma_f32_16x16x32_bf16 {vr(acc+4*ct,4)}, {vr(fV+(ct*4+s)*4,4)}, {vr(pf+4*s,4)}, {c}")
        Ls = self.lab("nostats")
        a("  s_waitcnt lgkmcnt(0)")
        a(f"  s_cmp_eq_u32 s{sW}, 0\n  s_cbranch_scc0 {Ls}")
        a(f"  v_add_f32 v{l8}, v{l8}, v{l8+1}\n  v_add_f32 v{l8+2}, v{l8+2}, v{l8+3}\n  v_add_f32 v{l8+4}, v{l8+4}, v{l8+5}\n  v_add_f32 v{l8+6}, v{l8+6}, v{l8+7}")
        a(f"  v_add_f32 v{l8}, v{l8}, v{l8+2}\n  v_add_f32 v{l8+4}, v{l8+4}, v{l8+6}\n  v_add_f32 v{l8+1}, v{l8}, v{l8+4}")
        a(f"  v_mov_b32 v{l8}, v{mx}")
        a(f"  buffer_store_dwordx2 {vr(l8,2)}, v{vSTP}, {srd(SRD_WS)}, 0 offen sc1")
        a.label(Ls)
        pkd = T + 16
        for pp in range(2):
            for u in range(2):
                ac = acc + 4*(2*pp+u)
                a(f"  v_cvt_pk_bf16_f32 v{pkd+4*pp+2*u}, v{ac}, v{ac+1}\n  v_cvt_pk_bf16_f32 v{pkd+4*pp+2*u+1}, v{ac+2}, v{ac+3}")
        for pp in range(2):
            b0 = pkd + 4*pp
            a(f"  v_permlane16_swap_b32 v{b0}, v{b0+2}\n  v_permlane16_swap_b32 v{b0+1}, v{b0+3}")
        for pp in range(2):
            a(f"  buffer_store_dwordx4 {vr(pkd+4*pp,4)}, v{vOP}, {srd(SRD_WS)}, 0 offen offset:{64*pp} sc1")
        self.ts(6)
        if self.stop == "attn":
            self.ts_flush(); a("  s_endpgm"); return
        Lend = self.lab("noffn")
        a(f"  s_cmp_lt_u32 s{sFS}, 27\n  s_cbranch_scc0 {Lend}")
        self.mksrd(SRD_B, P_W1, 640*3456)
        self.mksrd(SRD_C, P_W2, 1728*1280)
        a("  s_barrier")
        vW1 = T
        a(f"""
  v_lshrrev_b32 v{vT0}, 3, v1
  v_bfe_u32 v{vT1}, v{vT0}, 1, 1
  s_and_b32 s{sT0}, s{sW}, 1
  s_lshl_b32 s{sT0}, s{sT0}, 1
  v_or_b32 v{vT1}, s{sT0}, v{vT1}
  v_lshlrev_b32 v{vT1}, 1, v{vT1}
  v_and_b32 v{vW1}, 7, v1
  v_xor_b32 v{vW1}, v{vW1}, v{vT1}
  v_lshlrev_b32 v{vW1}, 4, v{vW1}
  v_mul_u32_u24 v{vT0}, 3456, v{vT0}
  v_add_u32 v{vW1}, v{vW1}, v{vT0}
  s_mul_i32 s{sT0}, s{sJJ}, {160*3456}
  s_lshl_b32 s{sT1}, s{sFS}, 7
  s_add_u32 s{sT0}, s{sT0}, s{sT1}
  s_mul_i32 s{sT1}, s{sW}, {8*3456}
  s_add_u32 s{sT0}, s{sT0}, s{sT1}
  s_lshl_b32 s{sT1}, s{sW}, 10
  s_add_u32 s{sT1}, s{sT1}, {A_W1}
""")
        Lw = self.lab("w1done")
        for k in range(3):
            if k == 2:
                a(f"  s_cmp_lt_u32 s{sW}, 4\n  s_cbranch_scc0 {Lw}")
            a(f"  s_mov_b32 m0, s{sT1}")
            a(f"  s_add_u32 s{sT1}, s{sT1}, 8192")
            a(f"  buffer_load_dwordx4 v{vW1}, {srd(SRD_B)}, s{sT0} offen {self.nt_w} lds")
            if k < 2: a(f"  s_add_u32 s{sT0}, s{sT0}, {64*3456}")
        a(f"""
  s_lshl_b32 s{sT0}, s{sFS}, 6
  s_lshl_b32 s{sT1}, s{sW}, 4
  s_add_u32 s{sT0}, s{sT0}, s{sT1}
  s_mul_i32 s{sT0}, s{sT0}, 1280
  s_mul_i32 s{sT1}, s{sJJ}, 320
  s_add_u32 s{sT0}, s{sT0}, s{sT1}
  s_mul_i32 s{sT1}, s{sW}, 5120
  s_add_u32 s{sT1}, s{sT1}, {A_W2}
""")
        self.dma_rows320(SRD_C, sT0, sT1, T+1, T+2, T+3, self.nt_w)
        a.label(Lw)
        vX1, vTR1, vP1, vH, vHR, vTR2, vF2 = T+4, T+5, T+6, T+7, T+8, T+9, T+10
        a(f"""
  s_mul_i32 s{sT0}, s{sJJ}, 320
  s_add_u32 s{sT0}, s{sT0}, {A_XN}
  v_and_b32 v{vT0}, 1, v2
  v_mul_u32_u24 v{vX1}, 1280, v{vT0}
  v_lshl_add_u32 v{vX1}, v3, 4, v{vX1}
  v_add_u32 v{vX1}, s{sT0}, v{vX1}
  v_lshrrev_b32 v{vT0}, 2, v2
  v_lshl_add_u32 v{vT1}, v3, 3, v{vT0}
  v_lshlrev_b32 v{vTR1}, 7, v{vT1}
  v_lshrrev_b32 v{vT0}, 1, v{vT0}
  v_and_b32 v{vT1}, 1, v3
  v_lshl_or_b32 v{vT0}, v{vT1}, 1, v{vT0}
  v_lshlrev_b32 v{vT0}, 1, v{vT0}
  v_bfe_u32 v{vT1}, v2, 1, 1
  s_and_b32 s{sT0}, s{sW}, 3
  s_lshl_b32 s{sT0}, s{sT0}, 1
  v_or_b32 v{vT1}, s{sT0}, v{vT1}
  v_xor_b32 v{vT1}, v{vT1}, v{vT0}
  v_lshl_add_u32 v{vTR1}, v{vT1}, 4, v{vTR1}
  v_and_b32 v{vT0}, 1, v2
  v_lshl_add_u32 v{vTR1}, v{vT0}, 3, v{vTR1}
""")
        a(f"""
  s_lshl_b32 s{sT0}, s{sFS}, 2
  s_add_u32 s{sT0}, s{sT0}, s{sJJ}
  s_lshl_b32 s{sT0}, s{sT0}, 9
  s_lshl_b32 s{sT1}, s{sW}, 6
  s_add_u32 s{sT0}, s{sT0}, s{sT1}
  s_add_u32 s{sT0}, s{sT0}, {WS_E5}
  v_and_b32 v{vT0}, 1, v2
  v_lshlrev_b32 v{vP1}, 8, v{vT0}
  v_lshl_add_u32 v{vP1}, v3, 4, v{vP1}
  v_add_u32 v{vP1}, s{sT0}, v{vP1}
  v_mul_u32_u24 v{vHR}, 160, v{vT0}
  v_lshl_add_u32 v{vHR}, v3, 4, v{vHR}
  v_add_u32 v{vHR}, {A_H}, v{vHR}
  v_mul_u32_u24 v{vH}, 160, v3
  v_lshl_add_u32 v{vH}, v2, 3, v{vH}
  v_add_u32 v{vH}, {A_H}, v{vH}
""")
        a(f"""
  v_lshrrev_b32 v{vT0}, 2, v2
  v_lshl_add_u32 v{vT0}, v3, 3, v{vT0}
  v_mul_u32_u24 v{vTR2}, 320, v{vT0}
  v_and_b32 v{vT0}, 3, v2
  v_lshl_add_u32 v{vTR2}, v{vT0}, 3, v{vTR2}
  s_lshl_b32 s{sT0}, s{sW}, 5
  s_add_u32 s{sT0}, s{sT0}, {A_W2}
  v_add_u32 v{vTR2}, s{sT0}, v{vTR2}
  s_mul_i32 s{sT0}, s{sJJ}, 10
  s_add_u32 s{sT0}, s{sT0}, s{sW}
  s_lshl_b32 s{sT0}, s{sT0}, 6
  s_add_u32 s{sT0}, s{sT0}, s{sFS}
  s_add_u32 s{sT0}, s{sT0}, 32
  s_lshl_b32 s{sT0}, s{sT0}, 7
  s_add_u32 s{sT0}, s{sT0}, {WS_FIN}
  v_and_b32 v{vT0}, 1, v2
  v_lshlrev_b32 v{vF2}, 6, v{vT0}
  v_lshl_add_u32 v{vF2}, v3, 4, v{vF2}
  v_add_u32 v{vF2}, s{sT0}, v{vF2}
""")
        a("  s_waitcnt vmcnt(0)\n  s_barrier")
        self.ts(7)
        F = fQ
        L1f = self.lab("noffn1")
        a(f"  s_cmp_lt_u32 s{sW}, 4\n  s_cbranch_scc0 {L1f}")
        xf, af, ac = F, F+20, F+40
        for s in range(5):
            a(f"  ds_read_b128 {vr(xf+4*s,4)}, v{vX1} offset:{64*s}")
            a(f"  ds_read_b64_tr_b16 {vr(af+4*s,2)}, v{vTR1} offset:{A_W1 + 32*s*128}")
            a(f"  ds_read_b64_tr_b16 {vr(af+4*s+2,2)}, v{vTR1} offset:{A_W1 + (32*s+4)*128}")
        for s in range(5):
            a(f"  s_waitcnt lgkmcnt({12-3*s})")
            c = "0" if s == 0 else vr(ac, 4)
            a(f"  v_mfma_f32_16x16x32_bf16 {vr(ac,4)}, {vr(af+4*s,4)}, {vr(xf+4*s,4)}, {c}")
        self.tagpack([ac+i for i in range(4)], vTAG)
        a(f"  s_mov_b64 exec, s[{sM2}:{sM2+1}]")
        a(f"  buffer_store_dwordx4 {vr(ac,4)}, v{vP1}, {srd(SRD_WS)}, 0 offen sc1")
        a("  s_mov_b64 exec, -1")
        a.label(L1f)
        f2a, f2b = F+48, F+56
        for s in range(2):
            a(f"  ds_read_b64_tr_b16 {vr(f2a+4*s,2)}, v{vTR2} offset:{32*s*320}")
            a(f"  ds_read_b64_tr_b16 {vr(f2a+4*s+2,2)}, v{vTR2} offset:{(32*s+4)*320}")
        for s in range(2):
            a(f"  ds_read_b64_tr_b16 {vr(f2b+4*s,2)}, v{vTR2} offset:{32*s*320+256}")
            a(f"  ds_read_b64_tr_b16 {vr(f2b+4*s+2,2)}, v{vTR2} offset:{(32*s+4)*320+256}")
        Lh = self.lab("noh")
        a(f"  s_cmp_eq_u32 s{sW}, 4\n  s_cbranch_scc0 {Lh}")
        a(f"  s_lshl_b32 s{sT0}, s{sFS}, 11\n  s_add_u32 s{sT0}, s{sT0}, {WS_E5}")
        a(f"  s_mov_b64 exec, s[{sM32}:{sM32+1}]")
        Lp = self.lab("pollH")
        a.label(Lp)
        for k in range(4):
            a(f"  buffer_load_dwordx4 {vr(F+4*k,4)}, v{vL16}, {srd(SRD_WS)}, s{sT0} offen offset:{512*k} sc1")
        a("  s_waitcnt vmcnt(0)")
        self.tagcheck([F+i for i in range(16)], F+16, vTAG)
        self.poll_tail(Lp)
        for r in range(4):
            a(f"  v_add_f32 v{F+r}, v{F+r}, v{F+4+r}\n  v_add_f32 v{F+8+r}, v{F+8+r}, v{F+12+r}\n  v_add_f32 v{F+r}, v{F+r}, v{F+8+r}")
            self.rb(F+r, F+r)
            self.silu(F+r, F+r, F+16)
        a(f"  v_cvt_pk_bf16_f32 v{F}, v{F}, v{F+1}\n  v_cvt_pk_bf16_f32 v{F+1}, v{F+2}, v{F+3}")
        a(f"  ds_write_b64 v{vH}, {vr(F,2)}")
        a("  s_mov_b64 exec, -1")
        a.label(Lh)
        a("  s_waitcnt lgkmcnt(0)\n  s_barrier")
        hf, ac, acb = F, F+8, F+12
        for t in range(2):
            a(f"  ds_read_b128 {vr(hf+4*t,4)}, v{vHR} offset:{64*t}")
        for t in range(2):
            a(f"  s_waitcnt lgkmcnt({1-t})")
            c = "0" if t == 0 else vr(ac, 4)
            a(f"  v_mfma_f32_16x16x32_bf16 {vr(ac,4)}, {vr(f2a+4*t,4)}, {vr(hf+4*t,4)}, {c}")
            c = "0" if t == 0 else vr(acb, 4)
            a(f"  v_mfma_f32_16x16x32_bf16 {vr(acb,4)}, {vr(f2b+4*t,4)}, {vr(hf+4*t,4)}, {c}")
        self.tagpack([ac+i for i in range(4)], vTAG)
        self.tagpack([acb+i for i in range(4)], vTAG)
        a(f"  s_mov_b64 exec, s[{sM2}:{sM2+1}]")
        a(f"  buffer_store_dwordx4 {vr(ac,4)}, v{vF2}, {srd(SRD_WS)}, 0 offen sc1")
        L2t = self.lab("no2t")
        a(f"  s_cmp_lt_u32 s{sW}, 2\n  s_cbranch_scc0 {L2t}")
        a(f"  s_mov_b32 s{sT0}, {8*64*128}")
        a(f"  buffer_store_dwordx4 {vr(acb,4)}, v{vF2}, {srd(SRD_WS)}, s{sT0} offen sc1")
        a.label(L2t)
        a("  s_mov_b64 exec, -1")
        self.ts(8)
        a.label(Lend)
        self.ts_flush(0)
        a("  s_endpgm")

    def build(self):
        self.prologue()
        self.role_w()
        self.role_a()
        self.a.label("L_end")
        self.a("  s_endpgm")
        body, n = hazard_pass(self.a.text())
        hdr = open("cdna_kernels/" + NAME + ".s.ref").read().split("\n")
        head = []
        for ln in hdr:
            if ln.startswith("; @launch"):
                head.append(f"; @launch grid=(256,1,1) block=(512,1,1) lds={LDS_BYTES}")
                break
            if ln.startswith("; Override") or ln.startswith("; grid="):
                continue
            head.append(ln)
        txt = "\n".join(head) + "\n"
        txt += f""".amdgcn_target "amdgcn-amd-amdhsa--gfx950"
.text
.globl {NAME}_kernel
.p2align 8
.type {NAME}_kernel,@function
{NAME}_kernel:
{body}
.section .rodata,"a"
.p2align 6
.amdhsa_kernel {NAME}_kernel
  .amdhsa_next_free_vgpr 256
  .amdhsa_next_free_sgpr 102
  .amdhsa_accum_offset 256
  .amdhsa_group_segment_fixed_size 0
  .amdhsa_kernarg_size 96
  .amdhsa_user_sgpr_count 2
  .amdhsa_user_sgpr_kernarg_segment_ptr 1
  .amdhsa_system_sgpr_workgroup_id_x 1
.end_amdhsa_kernel
"""
        return txt

if __name__ == "__main__":
    import argparse
    ap = argparse.ArgumentParser()
    ap.add_argument("-o", default="cdna_kernels/" + NAME + ".s")
    ap.add_argument("--ts", action="store_true")
    ap.add_argument("--stop", default=None)
    ap.add_argument("--ntw", default="nt")
    ap.add_argument("--ntc", default="nt")
    args = ap.parse_args()
    g = Gen(ts=args.ts, stop=args.stop, nt_w=args.ntw, nt_ckv=args.ntc)
    t = g.build()
    open(args.o, "w").write(t)
    print("wrote", args.o, len(t), "bytes")
```

```python
import sys, struct
sys.path.insert(0, "gen")
from asmlib import Asm, hazard_pass

NAME = "recurrent_scan__compressed_kv_cla__dense_activation_silu__decode"

def f32(x):
    return "0x%08x" % struct.unpack("<I", struct.pack("<f", x))[0]

WS_EP   = 0x0
WS_CF   = 0x1000
WS_E0   = 0x2000
WS_QA   = 0x30000
WS_E3   = 0x40000
WS_FIN  = 0x60000
WS_E5   = 0xB0000
WS_OIN  = 0x100000
OIN_STRIDE = 16384 + 512
WS_TS   = 0x400000
WS_SIZE = 0x10000000

W_WQ, W_XN, W_XS, W_CL, W_WGT = 0, 40960, 43520, 45824, 46400
W_WUV, W_WO, W_OST = 49152, 81920, 122880
A_CKV, A_Q, A_P, A_M, A_L, A_XN, A_H = 0, 135168, 152064, 156160, 156672, 157184, 159744
A_W1, A_W2 = 0, 20480
CKS = 1056
LDS_BYTES = 163840

P_X, P_CKV, P_WQ, P_WUK, P_WUV, P_WO, P_BX, P_W1, P_W2, P_OUT, P_DBG, P_WS = 4, 6, 8, 10, 12, 14, 16, 18, 20, 22, 24, 26
SRD_X, SRD_A, SRD_B, SRD_C, SRD_D, SRD_WS, SRD_OUT = 28, 32, 36, 40, 44, 48, 52
sW, sH, sJ, sSP, sTAG32, sTAG8, sCNT = 56, 57, 58, 59, 60, 61, 62
sT0, sT1, sT2, sT3, sT4 = 63, 64, 65, 66, 67
sFS, sJJ = 68, 69
sM2, sM32 = 70, 72
sSAVE = 74
sB = 76
sMASKHI = 77
sTS = 80
POLL_LIMIT = 400000

def srd(n): return f"s[{n}:{n+3}]"
def vr(a, n): return f"v[{a}:{a+n-1}]" if n > 1 else f"v{a}"

class Gen:
    def __init__(self, ts=False, nt_w="nt", nt_ckv="nt", stop=None, ts_dbg=False):
        self.a = Asm()
        self.ts_on = ts
        self.ts_dbg = ts_dbg
        self.nt_w = nt_w
        self.nt_ckv = nt_ckv
        self.stop = stop
        self.uid = 0

    def lab(self, p):
        self.uid += 1
        return f"L_{p}_{self.uid}"

    def ts(self, k):
        if self.ts_on:
            self.a(f"  s_memrealtime s[{sTS+2*k}:{sTS+2*k+1}]\n  s_waitcnt lgkmcnt(0)")

    def ts_flush(self, wave=0):
        if not self.ts_on: return
        a = self.a
        L = self.lab("tsskip")
        a(f"  s_cmp_eq_u32 s{sW}, {wave}\n  s_cbranch_scc0 {L}")
        a(f"  s_lshl_b32 s{sT0}, s2, 6\n  s_add_u32 s{sT0}, s{sT0}, {WS_TS}")
        a("  s_mov_b64 exec, 1\n  v_mov_b32 v1, 0")
        for k in range(10):
            a(f"  v_mov_b32 v2, s{sTS+2*k}\n  buffer_store_dword v2, v1, {srd(SRD_WS)}, s{sT0} offen offset:{4*k}")
        if self.ts_dbg:
            L2 = self.lab("tsdbg")
            a(f"  s_and_b32 s{sT0}, s2, 127\n  s_cmp_eq_u32 s{sT0}, 0\n  s_cbranch_scc0 {L2}")
            self.mksrd(SRD_OUT, P_DBG, 256)
            a(f"  s_lshr_b32 s{sT0}, s2, 7\n  s_mul_i32 s{sT0}, s{sT0}, 40")
            for k in range(10):
                a(f"  v_mov_b32 v2, s{sTS+2*k}\n  buffer_store_dword v2, v1, {srd(SRD_OUT)}, s{sT0} offen offset:{4*k}")
            a.label(L2)
        a("  s_waitcnt vmcnt(0)")
        a.label(L)

    def mksrd(self, s, ptr, nbytes):
        self.a(f"  s_mov_b32 s{s}, s{ptr}\n  s_mov_b32 s{s+1}, s{ptr+1}\n  s_mov_b32 s{s+2}, {nbytes}\n  s_mov_b32 s{s+3}, 0x00020000")

    def poll_tail(self, loop):
        d = self.lab("pd")
        self.a(f"  s_add_u32 s{sCNT}, s{sCNT}, 1\n  s_cbranch_vccz {d}\n  s_cmp_lt_u32 s{sCNT}, {POLL_LIMIT}\n  s_cbranch_scc1 {loop}")
        self.a.label(d)

    def tagcheck(self, regs, tmp, vtag):
        a = self.a
        f = lambda x, y, z: ((x ^ z) | (y ^ z)) & 0xff
        t1 = f(0xF0, 0xCC, 0xAA)
        g = lambda x, y, z: (x | (y ^ z)) & 0xff
        t2 = g(0xF0, 0xCC, 0xAA)
        a(f"  v_bitop3_b32 v{tmp}, v{regs[0]}, v{regs[1]}, v{vtag} bitop3:{t1:#x}")
        for r in regs[2:]:
            a(f"  v_bitop3_b32 v{tmp}, v{tmp}, v{r}, v{vtag} bitop3:{t2:#x}")
        a(f"  v_and_b32 v{tmp}, 0xff, v{tmp}\n  v_cmp_ne_u32 vcc, 0, v{tmp}")

    def markcheck(self, regs, tmp):
        a = self.a
        a(f"  v_max3_u32 v{tmp}, v{regs[0]}, v{regs[1]}, v{regs[2]}")
        rest = regs[3:]
        while len(rest) >= 2:
            a(f"  v_max3_u32 v{tmp}, v{tmp}, v{rest[0]}, v{rest[1]}")
            rest = rest[2:]
        if rest:
            a(f"  v_max_u32 v{tmp}, v{tmp}, v{rest[0]}")
        a(f"  v_cmp_eq_u32 vcc, -1, v{tmp}")

    def tagpack(self, regs, vtag):
        for r in regs:
            self.a(f"  v_and_or_b32 v{r}, v{r}, s{sMASKHI}, v{vtag}")

    def red(self, regs, op, tmp, steps):
        a = self.a
        for s in steps:
            if s[0] == "r":
                for r in regs:
                    a(f"  {op}_dpp v{r}, v{r}, v{r} row_ror:{s[1:]} row_mask:0xf bank_mask:0xf")
            else:
                for i, r in enumerate(regs):
                    a(f"  v_mov_b32 v{tmp+i}, v{r}")
                for i, r in enumerate(regs):
                    a(f"  v_permlane{s[1:]}_swap_b32 v{r}, v{tmp+i}")
                for i, r in enumerate(regs):
                    a(f"  {op} v{r}, v{r}, v{tmp+i}")

    def rb(self, dst, src):
        self.a(f"  v_cvt_pk_bf16_f32 v{dst}, v{src}, v{src}\n  v_and_b32 v{dst}, 0xffff0000, v{dst}")

    def ln_load(self, vx):
        a = self.a
        a(f"  s_mul_i32 s{sT0}, s{sW}, 1280\n  v_mul_u32_u24 v{vx+5}, 20, v1\n  v_add_u32 v{vx+5}, s{sT0}, v{vx+5}")
        a(f"  buffer_load_dwordx4 {vr(vx,4)}, v{vx+5}, {srd(SRD_X)}, 0 offen\n  buffer_load_dword v{vx+4}, v{vx+5}, {srd(SRD_X)}, 0 offen offset:16")

    def ln_compute(self, vx, e, xn_base):
        a = self.a
        for k in range(5):
            a(f"  v_lshlrev_b32 v{e+2*k}, 16, v{vx+k}\n  v_and_b32 v{e+2*k+1}, 0xffff0000, v{vx+k}")
        s, t, m, mb = e+10, e+11, e+12, e+13
        a(f"  v_add_f32 v{s}, v{e}, v{e+1}")
        for k in range(2, 10):
            a(f"  v_add_f32 v{s}, v{s}, v{e+k}")
        self.red([s], "v_add_f32", t, ["r1", "r2", "r4", "r8", "p16", "p32"])
        a(f"  v_mul_f32 v{m}, {f32(1/640)}, v{s}")
        a(f"  v_mov_b32 v{s}, 0")
        for k in range(10):
            a(f"  v_sub_f32 v{t}, v{e+k}, v{m}\n  v_fmac_f32 v{s}, v{t}, v{t}")
        self.red([s], "v_add_f32", t, ["r1", "r2", "r4", "r8", "p16", "p32"])
        a(f"  v_mul_f32 v{s}, {f32(1/640)}, v{s}")
        self.rb(s, s)
        a(f"  v_add_f32 v{s}, {f32(1e-5)}, v{s}")
        self.rb(s, s)
        a(f"  v_sqrt_f32 v{s}, v{s}")
        self.rb(s, s)
        a(f"  v_rcp_f32 v{s}, v{s}")
        self.rb(mb, m)
        for k in range(5):
            x0, x1 = e+2*k, e+2*k+1
            a(f"  v_sub_f32 v{x0}, v{x0}, v{mb}\n  v_sub_f32 v{x1}, v{x1}, v{mb}")
            a(f"  v_cvt_pk_bf16_f32 v{t}, v{x0}, v{x1}")
            a(f"  v_lshlrev_b32 v{x0}, 16, v{t}\n  v_and_b32 v{x1}, 0xffff0000, v{t}")
            a(f"  v_mul_f32 v{x0}, v{x0}, v{s}\n  v_mul_f32 v{x1}, v{x1}, v{s}")
            a(f"  v_cvt_pk_bf16_f32 v{vx+k}, v{x0}, v{x1}")
        a(f"  v_add_u32 v{t}, {xn_base}, v{vx+5}")
        for k in range(5):
            a(f"  ds_write_b32 v{t}, v{vx+k} offset:{4*k}")

    def prologue(self):
        a = self.a
        a(f"""
  s_cmp_ge_u32 s2, 256
  s_cbranch_scc1 L_end
  s_load_dwordx16 s[4:19], s[0:1], 0
  s_load_dwordx8 s[20:27], s[0:1], 64
  v_lshrrev_b32 v4, 6, v0
  v_and_b32 v1, 63, v0
  v_readfirstlane_b32 s{sW}, v4
  v_and_b32 v2, 15, v0
  v_lshrrev_b32 v3, 4, v1
  s_mov_b32 s{sCNT}, 0
  s_mov_b32 s{sM2}, 0x00030003
  s_mov_b32 s{sM2+1}, 0x00030003
  s_mov_b32 s{sM32}, -1
  s_mov_b32 s{sM32+1}, 0
  s_mov_b32 s{sMASKHI}, 0xffffff00
""")
        self.ts_pre = True
        a("  s_cmp_lt_u32 s2, 128\n  s_cbranch_scc0 L_roleA")

    def role_w(self):
        a = self.a
        vDMA4, vUK, vTR, vXF, vPUB, vPOLL, vXSW, vXSR, vQAP, vTAG, vT0, vT1 = 4, 5, 6, 7, 8, 9, 10, 11, 12, 13, 14, 15
        fUK, fUV, fO0, fO1 = 16, 32, 48, 64
        T = 80
        a(f"""
  s_and_b32 s{sH}, s2, 7
  s_lshr_b32 s{sT0}, s2, 5
  s_lshl_b32 s{sT0}, s{sT0}, 3
  s_or_b32 s{sH}, s{sH}, s{sT0}
  s_lshr_b32 s{sJ}, s2, 3
  s_and_b32 s{sJ}, s{sJ}, 3
""")
        a(f"""
  s_lshr_b32 s{sT0}, s{sW}, 1
  s_and_b32 s{sT0}, s{sT0}, 1
  s_lshl_b32 s{sT0}, s{sT0}, 2
  v_or_b32 v{vT0}, s{sT0}, v3
  v_lshlrev_b32 v{vT0}, 1, v{vT0}
  v_xor_b32 v{vT0}, v{vT0}, v2
  v_lshlrev_b32 v{vT0}, 4, v{vT0}
  v_lshl_add_u32 v{vDMA4}, v3, 13, v{vT0}
  s_waitcnt lgkmcnt(0)
""")
        self.ts(0)
        self.mksrd(SRD_X, P_X, 2560)
        self.mksrd(SRD_A, P_WQ, 640*8192)
        self.mksrd(SRD_WS, P_WS, WS_SIZE)
        a(f"  s_load_dword s{sTAG32}, s[{P_WS}:{P_WS+1}], {WS_EP}")
        vx = T
        L1 = self.lab("nox")
        a(f"  s_cmp_lt_u32 s{sW}, 2\n  s_cbranch_scc0 {L1}")
        self.ln_load(vx)
        a.label(L1)
        vM1 = T + 8
        a(f"  v_mov_b32 v{vM1}, -1\n  v_mov_b32 v{vM1+1}, -1\n  v_mov_b32 v{vM1+2}, -1\n  v_mov_b32 v{vM1+3}, -1")
        L2 = self.lab("noclean")
        a(f"  s_cmp_eq_u32 s{sW}, 7\n  s_cbranch_scc0 {L2}")
        a(f"""
  s_lshl_b32 s{sT0}, s{sH}, 10
  s_lshl_b32 s{sT1}, s{sJ}, 8
  s_add_u32 s{sT0}, s{sT0}, s{sT1}
  s_add_u32 s{sT0}, s{sT0}, {WS_QA}
  v_lshlrev_b32 v{vT0}, 15, v3
  v_lshl_add_u32 v{vT0}, v2, 4, v{vT0}
  s_mov_b64 exec, s[{sM32}:{sM32+1}]
  buffer_store_dwordx4 {vr(vM1,4)}, v{vT0}, {srd(SRD_WS)}, s{sT0} offen sc1
  s_mov_b64 exec, -1
""")
        a.label(L2)
        a(f"""
  s_mul_i32 s{sT0}, s{sJ}, {160*8192}
  s_lshl_b32 s{sT1}, s{sH}, 8
  s_add_u32 s{sT0}, s{sT0}, s{sT1}
  s_lshl_b32 s{sT1}, s{sW}, 15
  s_add_u32 s{sT0}, s{sT0}, s{sT1}
  s_lshl_b32 s{sT1}, s{sW}, 10
  s_add_u32 s{sT1}, s{sT1}, {W_WQ}
""")
        for k in range(5):
            a(f"  s_mov_b32 m0, s{sT1}")
            a(f"  s_add_u32 s{sT1}, s{sT1}, 8192")
            a(f"  buffer_load_dwordx4 v{vDMA4}, {srd(SRD_A)}, s{sT0} offen {self.nt_w} lds")
            if k < 4: a(f"  s_add_u32 s{sT0}, s{sT0}, {32*8192}")
        self.mksrd(SRD_B, P_WUK, 512*8192)
        a(f"""
  s_lshl_b32 s{sT0}, s{sJ}, 7
  s_lshl_b32 s{sT1}, s{sW}, 4
  s_add_u32 s{sT0}, s{sT0}, s{sT1}
  s_lshl_b32 s{sT0}, s{sT0}, 13
  s_lshl_b32 s{sT1}, s{sH}, 8
  s_add_u32 s{sT0}, s{sT0}, s{sT1}
  v_lshlrev_b32 v{vUK}, 13, v2
  v_lshl_add_u32 v{vUK}, v3, 4, v{vUK}
""")
        for t in range(4):
            a(f"  buffer_load_dwordx4 {vr(fUK+4*t,4)}, v{vUK}, {srd(SRD_B)}, s{sT0} offen offset:{64*t} {self.nt_w}")
        a(f"""
  s_lshl_b32 s{sT0}, s{sH}, 2
  s_add_u32 s{sT0}, s{sT0}, s{sJ}
  s_mul_i32 s{sT4}, s{sT0}, {OIN_STRIDE}
  s_add_u32 s{sT4}, s{sT4}, {WS_OIN}
  s_lshl_b32 s{sT0}, s{sW}, 11
  s_add_u32 s{sT0}, s{sT0}, s{sT4}
  v_lshlrev_b32 v{vT0}, 4, v1
  buffer_store_dwordx4 {vr(vM1,4)}, v{vT0}, {srd(SRD_WS)}, s{sT0} offen sc1
  buffer_store_dwordx4 {vr(vM1,4)}, v{vT0}, {srd(SRD_WS)}, s{sT0} offen offset:1024 sc1
""")
        sOIN = 78
        a(f"  s_mov_b32 s{sOIN}, s{sT4}")
        L3 = self.lab("nostat")
        a(f"  s_cmp_eq_u32 s{sW}, 0\n  s_cbranch_scc0 {L3}")
        a(f"""
  s_add_u32 s{sT0}, s{sOIN}, 16384
  s_mov_b64 exec, s[{sM32}:{sM32+1}]
  buffer_store_dwordx4 {vr(vM1,4)}, v{vT0}, {srd(SRD_WS)}, s{sT0} offen sc1
  s_mov_b64 exec, -1
""")
        a.label(L3)
        a(f"""
  s_waitcnt lgkmcnt(0)
  s_add_u32 s{sTAG32}, s{sTAG32}, 1
  s_and_b32 s{sTAG8}, s{sTAG32}, 0xff
  v_mov_b32 v{vTAG}, s{sTAG8}
""")
        L4 = self.lab("nocf")
        a(f"  s_cmp_eq_u32 s{sW}, 7\n  s_cbranch_scc0 {L4}")
        a(f"""
  s_lshl_b32 s{sT0}, s{sH}, 2
  s_add_u32 s{sT0}, s{sT0}, s{sJ}
  s_lshl_b32 s{sT0}, s{sT0}, 2
  s_add_u32 s{sT0}, s{sT0}, {WS_CF}
  v_mov_b32 v{vT0}, 0
  v_mov_b32 v{vT1}, s{sTAG32}
  s_mov_b64 exec, 1
  s_waitcnt vmcnt(11)
  buffer_store_dword v{vT1}, v{vT0}, {srd(SRD_WS)}, s{sT0} offen sc1
  s_mov_b64 exec, -1
""")
        a.label(L4)
        a(f"""
  v_lshrrev_b32 v{vT0}, 2, v2
  v_and_b32 v{vT1}, 1, v3
  v_lshl_or_b32 v{vT1}, v{vT1}, 2, v{vT0}
  v_lshlrev_b32 v{vT1}, 1, v{vT1}
  v_lshl_add_u32 v{vT0}, v3, 3, v{vT0}
  v_lshlrev_b32 v{vTR}, 8, v{vT0}
  v_bfe_u32 v{vT0}, v2, 1, 1
  s_lshl_b32 s{sT0}, s{sW}, 1
  v_or_b32 v{vT0}, s{sT0}, v{vT0}
  v_xor_b32 v{vT0}, v{vT0}, v{vT1}
  v_lshl_add_u32 v{vTR}, v{vT0}, 4, v{vTR}
  v_and_b32 v{vT0}, 1, v2
  v_lshl_add_u32 v{vTR}, v{vT0}, 3, v{vTR}
""")
        a(f"""
  s_mul_i32 s{sT0}, s{sJ}, 320
  s_add_u32 s{sT0}, s{sT0}, {W_XN}
  v_and_b32 v{vT0}, 1, v2
  v_mul_u32_u24 v{vXF}, 1280, v{vT0}
  v_lshl_add_u32 v{vXF}, v3, 4, v{vXF}
  v_add_u32 v{vXF}, s{sT0}, v{vXF}
""")
        a(f"""
  s_lshl_b32 s{sT0}, s{sH}, 2
  s_add_u32 s{sT0}, s{sT0}, s{sJ}
  s_lshl_b32 s{sT0}, s{sT0}, 10
  s_lshl_b32 s{sT1}, s{sW}, 6
  s_add_u32 s{sT0}, s{sT0}, s{sT1}
  v_and_b32 v{vT0}, 1, v2
  v_lshlrev_b32 v{vPUB}, 9, v{vT0}
  v_lshl_add_u32 v{vPUB}, v3, 4, v{vPUB}
  v_add_u32 v{vPUB}, s{sT0}, v{vPUB}
""")
        a(f"""
  s_lshl_b32 s{sT0}, s{sH}, 3
  s_add_u32 s{sT0}, s{sT0}, s{sW}
  s_lshl_b32 s{sT0}, s{sT0}, 9
  v_lshlrev_b32 v{vPOLL}, 4, v1
  v_add_u32 v{vPOLL}, s{sT0}, v{vPOLL}
  s_mul_i32 s{sT0}, s{sW}, 288
  s_add_u32 s{sT0}, s{sT0}, {W_XS}
  v_lshlrev_b32 v{vXSW}, 3, v1
  v_add_u32 v{vXSW}, s{sT0}, v{vXSW}
  v_and_b32 v{vT0}, 7, v2
  v_mul_u32_u24 v{vXSR}, 288, v{vT0}
  v_lshl_add_u32 v{vXSR}, v3, 4, v{vXSR}
  v_add_u32 v{vXSR}, {W_XS}, v{vXSR}
""")
        a(f"""
  s_lshl_b32 s{sT0}, s{sH}, 10
  s_lshl_b32 s{sT1}, s{sJ}, 8
  s_add_u32 s{sT0}, s{sT0}, s{sT1}
  s_lshl_b32 s{sT1}, s{sW}, 5
  s_add_u32 s{sT0}, s{sT0}, s{sT1}
  s_add_u32 s{sT0}, s{sT0}, {WS_QA}
  v_and_b32 v{vT0}, 1, v2
  v_lshlrev_b32 v{vQAP}, 15, v{vT0}
  v_lshl_add_u32 v{vQAP}, v3, 3, v{vQAP}
  v_add_u32 v{vQAP}, s{sT0}, v{vQAP}
""")
        L5 = self.lab("noln")
        a(f"  s_cmp_lt_u32 s{sW}, 2\n  s_cbranch_scc0 {L5}")
        a("  s_waitcnt vmcnt(11)")
        self.ln_compute(vx, T + 16, W_XN)
        a.label(L5)
        a("  s_waitcnt vmcnt(6) lgkmcnt(0)\n  s_barrier")
        self.ts(1)
        xf, af, acc = T, T + 20, T + 40
        for s in range(5):
            a(f"  ds_read_b128 {vr(xf+4*s,4)}, v{vXF} offset:{64*s}")
            a(f"  ds_read_b64_tr_b16 {vr(af+4*s,2)}, v{vTR} offset:{W_WQ + 8192*s}")
            a(f"  ds_read_b64_tr_b16 {vr(af+4*s+2,2)}, v{vTR} offset:{W_WQ + 8192*s + 1024}")
        for s in range(5):
            a(f"  s_waitcnt lgkmcnt({12-3*s})")
            c = "0" if s == 0 else vr(acc, 4)
            a(f"  v_mfma_f32_16x16x32_bf16 {vr(acc,4)}, {vr(af+4*s,4)}, {vr(xf+4*s,4)}, {c}")
        sE0, sE3 = sT2, sT3
        a(f"  s_mov_b32 s{sE0}, {WS_E0}")
        self.publish_part(acc, vPUB, vTAG, sE0)
        self.ts(2)
        self.consume_part(vPOLL, vXSW, vTAG, sE0, T)
        self.ts(3)
        xr = T + 8
        for t in range(4):
            a(f"  ds_read_b128 {vr(xr+4*t,4)}, v{vXSR} offset:{64*t}")
        for t in range(4):
            a(f"  s_waitcnt lgkmcnt({3-t})")
            c = "0" if t == 0 else vr(acc, 4)
            a(f"  v_mfma_f32_16x16x32_bf16 {vr(acc,4)}, {vr(fUK+4*t,4)}, {vr(xr+4*t,4)}, {c}")
        self.red([acc, acc+1, acc+2, acc+3], "v_add_f32", T, ["r2", "r4"])
        sc = 128**-0.5 * 1.4426950408889634
        a(f"  s_mov_b32 s{sT0}, {f32(sc)}")
        for r in range(4):
            a(f"  v_mul_f32 v{acc+r}, s{sT0}, v{acc+r}")
        a(f"  v_cvt_pk_bf16_f32 v{acc}, v{acc}, v{acc+1}\n  v_cvt_pk_bf16_f32 v{acc+1}, v{acc+2}, v{acc+3}")
        a(f"  s_mov_b64 exec, s[{sM2}:{sM2+1}]")
        a(f"  buffer_store_dwordx2 {vr(acc,2)}, v{vQAP}, {srd(SRD_WS)}, 0 offen sc1")
        a("  s_mov_b64 exec, -1")
        self.ts(4)
        if self.stop == "p1":
            self.ts_flush(); a("  s_endpgm"); return
        self.mksrd(SRD_C, P_WUV, 512*8192)
        self.mksrd(SRD_D, P_WO, 32*163840)
        a(f"""
  s_lshl_b32 s{sT0}, s{sJ}, 20
  s_lshl_b32 s{sT1}, s{sH}, 8
  s_add_u32 s{sT0}, s{sT0}, s{sT1}
  s_lshl_b32 s{sT1}, s{sW}, 15
  s_add_u32 s{sT0}, s{sT0}, s{sT1}
  s_lshl_b32 s{sT1}, s{sW}, 10
  s_add_u32 s{sT1}, s{sT1}, {W_WUV}
""")
        for k in range(4):
            a(f"  s_mov_b32 m0, s{sT1}")
            a(f"  s_add_u32 s{sT1}, s{sT1}, 8192")
            a(f"  buffer_load_dwordx4 v{vDMA4}, {srd(SRD_C)}, s{sT0} offen {self.nt_w} lds")
            if k < 3: a(f"  s_add_u32 s{sT0}, s{sT0}, {32*8192}")
        a(f"""
  s_mul_i32 s{sT0}, s{sH}, 163840
  s_mul_i32 s{sT1}, s{sW}, {16*1280}
  s_add_u32 s{sT0}, s{sT0}, s{sT1}
  s_mul_i32 s{sT1}, s{sJ}, 320
  s_add_u32 s{sT0}, s{sT0}, s{sT1}
  s_mul_i32 s{sT1}, s{sW}, 5120
  s_add_u32 s{sT1}, s{sT1}, {W_WO}
""")
        self.dma_rows320(SRD_D, sT0, sT1, T, T+1, T+2, self.nt_w)
        vTRV, vTRO, vOL, vOW, vSTL, vOTR, vWGW, vWGR, vCLW, vCLR, vFINP = T+40, T+41, T+42, T+43, T+44, T+45, T+46, T+47, T+48, T+49, T+50
        a(f"  v_add_u32 v{vTRV}, {W_WUV}, v{vTR}")
        a(f"""
  v_lshrrev_b32 v{vT0}, 2, v2
  v_lshl_add_u32 v{vT0}, v3, 3, v{vT0}
  v_mul_u32_u24 v{vTRO}, 320, v{vT0}
  v_and_b32 v{vT0}, 3, v2
  v_lshl_add_u32 v{vTRO}, v{vT0}, 3, v{vTRO}
  s_lshl_b32 s{sT0}, s{sW}, 5
  s_add_u32 s{sT0}, s{sT0}, {W_WO}
  v_add_u32 v{vTRO}, s{sT0}, v{vTRO}
""")
        a(f"""
  s_lshl_b32 s{sT0}, s{sW}, 3
  v_add_u32 v{vT0}, s{sT0}, v3
  v_lshlrev_b32 v{vOL}, 8, v{vT0}
  v_lshl_add_u32 v{vOL}, v2, 4, v{vOL}
  v_mul_u32_u24 v{vOW}, 288, v{vT0}
  v_lshl_add_u32 v{vOW}, v2, 4, v{vOW}
  v_add_u32 v{vOW}, {W_OST}, v{vOW}
  v_lshlrev_b32 v{vSTL}, 3, v1
  v_add_u32 v{vSTL}, 16384, v{vSTL}
""")
        a(f"""
  v_lshrrev_b32 v{vT0}, 2, v2
  v_lshl_add_u32 v{vT0}, v3, 2, v{vT0}
  v_mul_u32_u24 v{vOTR}, 288, v{vT0}
  v_and_b32 v{vT0}, 3, v2
  v_lshl_add_u32 v{vOTR}, v{vT0}, 3, v{vOTR}
  s_lshl_b32 s{sT0}, s{sW}, 5
  s_add_u32 s{sT0}, s{sT0}, {W_OST}
  v_add_u32 v{vOTR}, s{sT0}, v{vOTR}
""")
        a(f"""
  v_lshrrev_b32 v{vT0}, 5, v1
  v_lshlrev_b32 v{vWGW}, 6, v{vT0}
  v_bfe_u32 v{vT0}, v1, 2, 2
  v_lshl_add_u32 v{vWGW}, v{vT0}, 4, v{vWGW}
  v_bfe_u32 v{vT0}, v1, 4, 1
  v_lshl_add_u32 v{vWGW}, v{vT0}, 3, v{vWGW}
  v_and_b32 v{vT0}, 3, v1
  v_lshl_add_u32 v{vWGW}, v{vT0}, 1, v{vWGW}
  s_lshl_b32 s{sT0}, s{sW}, 8
  s_add_u32 s{sT0}, s{sT0}, {W_WGT}
  v_add_u32 v{vWGW}, s{sT0}, v{vWGW}
  v_and_b32 v{vT0}, 1, v2
  v_lshlrev_b32 v{vWGR}, 7, v{vT0}
  v_lshl_add_u32 v{vWGR}, v3, 4, v{vWGR}
  v_add_u32 v{vWGR}, s{sT0}, v{vWGR}
""")
        a(f"""
  v_and_b32 v{vT0}, 1, v2
  v_mul_u32_u24 v{vCLR}, 288, v{vT0}
  v_add_u32 v{vCLR}, {W_CL}, v{vCLR}
  s_lshl_b32 s{sT0}, s{sW}, 5
  v_lshl_add_u32 v{vCLW}, v3, 3, v{vCLR}
  v_add_u32 v{vCLW}, s{sT0}, v{vCLW}
  v_lshl_add_u32 v{vCLR}, v3, 4, v{vCLR}
""")
        a(f"""
  s_mul_i32 s{sT0}, s{sJ}, 10
  s_add_u32 s{sT0}, s{sT0}, s{sW}
  s_lshl_b32 s{sT0}, s{sT0}, 6
  s_add_u32 s{sT0}, s{sT0}, s{sH}
  s_lshl_b32 s{sT0}, s{sT0}, 7
  s_add_u32 s{sT0}, s{sT0}, {WS_FIN}
  v_and_b32 v{vT0}, 1, v2
  v_lshlrev_b32 v{vFINP}, 6, v{vT0}
  v_lshl_add_u32 v{vFINP}, v3, 4, v{vFINP}
  v_add_u32 v{vFINP}, s{sT0}, v{vFINP}
""")
        a("  s_waitcnt vmcnt(0)\n  s_barrier")
        for s in range(4):
            a(f"  ds_read_b64_tr_b16 {vr(fUV+4*s,2)}, v{vTRV} offset:{8192*s}")
            a(f"  ds_read_b64_tr_b16 {vr(fUV+4*s+2,2)}, v{vTRV} offset:{8192*s+1024}")
        for s in range(4):
            a(f"  ds_read_b64_tr_b16 {vr(fO0+4*s,2)}, v{vTRO} offset:{32*s*320}")
            a(f"  ds_read_b64_tr_b16 {vr(fO0+4*s+2,2)}, v{vTRO} offset:{(32*s+4)*320}")
        L6 = self.lab("no2tile")
        a(f"  s_cmp_lt_u32 s{sW}, 2\n  s_cbranch_scc0 {L6}")
        for s in range(4):
            a(f"  ds_read_b64_tr_b16 {vr(fO1+4*s,2)}, v{vTRO} offset:{32*s*320 + 256}")
            a(f"  ds_read_b64_tr_b16 {vr(fO1+4*s+2,2)}, v{vTRO} offset:{(32*s+4)*320 + 256}")
        a.label(L6)
        a("  s_waitcnt lgkmcnt(0)")
        self.ts(5)
        o0, o1, st = T, T+4, T+8
        Lp = self.lab("pollO")
        a.label(Lp)
        a(f"  buffer_load_dwordx2 {vr(st,2)}, v{vSTL}, {srd(SRD_WS)}, s{sOIN} offen sc1")
        a(f"  buffer_load_dwordx4 {vr(o0,4)}, v{vOL}, {srd(SRD_WS)}, s{sOIN} offen sc1")
        a(f"  buffer_load_dwordx4 {vr(o1,4)}, v{vOL}, {srd(SRD_WS)}, s{sOIN} offen offset:1024 sc1")
        a("  s_waitcnt vmcnt(0)")
        self.markcheck([o0+i for i in range(8)] + [st, st+1], T+10)
        self.poll_tail(Lp)
        self.ts(6)
        a(f"  ds_write_b128 v{vOW}, {vr(o0,4)}\n  ds_write_b128 v{vOW}, {vr(o1,4)} offset:{4*288}")
        mx, wv, tmp = T+10, T+11, T+12
        a(f"  v_mov_b32 v{mx}, v{st}")
        self.red([mx], "v_max_f32", tmp, ["r1", "r2", "r4", "r8", "p16"])
        a(f"  v_sub_f32 v{wv}, v{st}, v{mx}\n  v_exp_f32 v{wv}, v{wv}")
        a(f"  v_cvt_pk_bf16_f32 v{tmp}, v{wv}, v{wv}")
        a(f"  v_mov_b32 v{tmp+1}, 0")
        a(f"  v_lshrrev_b32 v{tmp+2}, 5, v1\n  v_lshlrev_b32 v{tmp+2}, 7, v{tmp+2}")
        a(f"  v_add_u32 v{tmp+3}, v{vWGW}, v{tmp+2}")
        a(f"  v_xor_b32 v{tmp+2}, 128, v{tmp+2}\n  v_add_u32 v{tmp+2}, v{vWGW}, v{tmp+2}")
        a(f"  ds_write_b16 v{tmp+3}, v{tmp}\n  ds_write_b16 v{tmp+2}, v{tmp+1}")
        a(f"  v_and_b32 v{wv}, 0xffff0000, v{tmp}\n  v_mul_f32 v{wv}, v{wv}, v{st+1}")
        a("  s_waitcnt lgkmcnt(0)\n  s_barrier")
        ot, wf = T+16, T+24
        for s in range(2):
            a(f"  ds_read_b64_tr_b16 {vr(ot+4*s,2)}, v{vOTR} offset:{32*s*288}")
            a(f"  ds_read_b64_tr_b16 {vr(ot+4*s+2,2)}, v{vOTR} offset:{(32*s+16)*288}")
            a(f"  ds_read_b128 {vr(wf+4*s,4)}, v{vWGR} offset:{64*s}")
        self.red([wv], "v_add_f32", tmp, ["r1", "r2", "r4", "r8", "p16"])
        a(f"  v_rcp_f32 v{wv}, v{wv}")
        a(f"  s_nop 0\n  v_readlane_b32 s{sT0}, v{wv}, 0\n  v_readlane_b32 s{sT1}, v{wv}, 32")
        a(f"  v_and_b32 v{tmp}, 1, v2\n  v_cmp_eq_u32 vcc, 0, v{tmp}")
        a(f"  v_mov_b32 v{tmp}, s{sT1}\n  v_mov_b32 v{tmp+1}, s{sT0}\n  v_cndmask_b32 v{tmp}, v{tmp}, v{tmp+1}, vcc")
        acc2 = T + 32
        a("  s_waitcnt lgkmcnt(3)")
        a(f"  v_mfma_f32_16x16x32_bf16 {vr(acc2,4)}, {vr(ot,4)}, {vr(wf,4)}, 0")
        a("  s_waitcnt lgkmcnt(0)")
        a(f"  v_mfma_f32_16x16x32_bf16 {vr(acc2,4)}, {vr(ot+4,4)}, {vr(wf+4,4)}, {vr(acc2,4)}")
        for r in range(4):
            a(f"  v_mul_f32 v{acc2+r}, v{acc2+r}, v{tmp}")
        a(f"  v_cvt_pk_bf16_f32 v{acc2}, v{acc2}, v{acc2+1}\n  v_cvt_pk_bf16_f32 v{acc2+1}, v{acc2+2}, v{acc2+3}")
        a(f"  ds_write_b64 v{vCLW}, {vr(acc2,2)}")
        a("  s_waitcnt lgkmcnt(0)\n  s_barrier")
        cf = T + 16
        for t in range(4):
            a(f"  ds_read_b128 {vr(cf+4*t,4)}, v{vCLR} offset:{64*t}")
        for t in range(4):
            a(f"  s_waitcnt lgkmcnt({3-t})")
            c = "0" if t == 0 else vr(acc2, 4)
            a(f"  v_mfma_f32_16x16x32_bf16 {vr(acc2,4)}, {vr(fUV+4*t,4)}, {vr(cf+4*t,4)}, {c}")
        a(f"  s_mov_b32 s{sE3}, {WS_E3}")
        self.publish_part(acc2, vPUB, vTAG, sE3)
        self.ts(7)
        self.consume_part(vPOLL, vXSW, vTAG, sE3, T)
        xr = T + 8
        for t in range(4):
            a(f"  ds_read_b128 {vr(xr+4*t,4)}, v{vXSR} offset:{64*t}")
        accB = T + 36
        for t in range(4):
            a(f"  s_waitcnt lgkmcnt({3-t})")
            c = "0" if t == 0 else vr(acc2, 4)
            a(f"  v_mfma_f32_16x16x32_bf16 {vr(acc2,4)}, {vr(fO0+4*t,4)}, {vr(xr+4*t,4)}, {c}")
        L7 = self.lab("no2b")
        a(f"  s_cmp_lt_u32 s{sW}, 2\n  s_cbranch_scc0 {L7}")
        for t in range(4):
            c = "0" if t == 0 else vr(accB, 4)
            a(f"  v_mfma_f32_16x16x32_bf16 {vr(accB,4)}, {vr(fO1+4*t,4)}, {vr(xr+4*t,4)}, {c}")
        self.red([accB+i for i in range(4)], "v_add_f32", T, ["r2", "r4"])
        self.tagpack([accB+i for i in range(4)], vTAG)
        a(f"  s_mov_b32 s{sT0}, {8*64*128}")
        a(f"  s_mov_b64 exec, s[{sM2}:{sM2+1}]")
        a(f"  buffer_store_dwordx4 {vr(accB,4)}, v{vFINP}, {srd(SRD_WS)}, s{sT0} offen sc1")
        a("  s_mov_b64 exec, -1")
        a.label(L7)
        self.red([acc2+i for i in range(4)], "v_add_f32", T, ["r2", "r4"])
        self.tagpack([acc2+i for i in range(4)], vTAG)
        a(f"  s_mov_b64 exec, s[{sM2}:{sM2+1}]")
        a(f"  buffer_store_dwordx4 {vr(acc2,4)}, v{vFINP}, {srd(SRD_WS)}, 0 offen sc1")
        a("  s_mov_b64 exec, -1")
        self.ts(8)
        Lf = self.lab("nofinal")
        a(f"  s_cmp_lt_u32 s{sH}, 10\n  s_cbranch_scc0 {Lf}")
        a(f"  s_cmp_eq_u32 s{sW}, 7\n  s_cbranch_scc0 {Lf}")
        self.final(T, vTAG)
        a.label(Lf)
        self.ts(9)
        self.ts_flush(7)
        a("  s_endpgm")

    def dma_rows320(self, S, sOFF, sLDS, vq, vr_, vo, nt):
        a = self.a
        for k in range(5):
            a(f"  v_add_u32 v{vq}, {64*k}, v1")
            a(f"  v_mul_u32_u24 v{vr_}, 3277, v{vq}\n  v_lshrrev_b32 v{vr_}, 16, v{vr_}")
            a(f"  v_mul_u32_u24 v{vo}, 20, v{vr_}\n  v_sub_u32 v{vq}, v{vq}, v{vo}")
            a(f"  v_mul_u32_u24 v{vo}, 1280, v{vr_}\n  v_lshl_add_u32 v{vo}, v{vq}, 4, v{vo}")
            a(f"  s_mov_b32 m0, s{sLDS}")
            a(f"  s_add_u32 s{sLDS}, s{sLDS}, 1024")
            a(f"  buffer_load_dwordx4 v{vo}, {srd(S)}, s{sOFF} offen {nt} lds")

    def publish_part(self, acc, vPUB, vTAG, sBase):
        a = self.a
        self.tagpack([acc+i for i in range(4)], vTAG)
        a(f"  s_mov_b64 exec, s[{sM2}:{sM2+1}]")
        a(f"  buffer_store_dwordx4 {vr(acc,4)}, v{vPUB}, {srd(SRD_WS)}, s{sBase} offen sc1")
        a("  s_mov_b64 exec, -1")

    def consume_part(self, vPOLL, vXSW, vTAG, sBase, T):
        a = self.a
        Lp = self.lab("pollp")
        a(f"  s_mov_b64 exec, s[{sM32}:{sM32+1}]")
        a.label(Lp)
        a(f"  buffer_load_dwordx4 {vr(T,4)}, v{vPOLL}, {srd(SRD_WS)}, s{sBase} offen sc1")
        a("  s_waitcnt vmcnt(0)")
        self.tagcheck([T, T+1, T+2, T+3], T+4, vTAG)
        self.poll_tail(Lp)
        a(f"  v_cvt_pk_bf16_f32 v{T}, v{T}, v{T+1}\n  v_cvt_pk_bf16_f32 v{T+1}, v{T+2}, v{T+3}")
        a(f"  ds_write_b64 v{vXSW}, {vr(T,2)}")
        a("  s_mov_b64 exec, -1")
        a("  s_waitcnt lgkmcnt(0)\n  s_barrier")

    def silu(self, dst, src, tmp):
        a = self.a
        a(f"  v_mul_f32 v{tmp}, {f32(-1.4426950408889634)}, v{src}\n  v_exp_f32 v{tmp}, v{tmp}")
        a(f"  v_add_f32 v{tmp}, 1.0, v{tmp}\n  v_rcp_f32 v{tmp}, v{tmp}")
        a(f"  v_mul_f32 v{dst}, v{src}, v{tmp}")

    def final(self, T, vTAG):
        a = self.a
        R = T
        vA, vX, vO, tmp = T+32, T+34, T+36, T+40
        a(f"""
  s_mul_i32 s{sT0}, s{sJ}, 10
  s_add_u32 s{sT0}, s{sT0}, s{sH}
  s_lshl_b32 s{sT0}, s{sT0}, 13
  s_add_u32 s{sT0}, s{sT0}, {WS_FIN}
  s_add_u32 s{sT1}, s{sT0}, 4096
  v_lshlrev_b32 v{vA}, 4, v1
""")
        self.mksrd(SRD_X, P_X, 2560)
        self.mksrd(SRD_OUT, P_OUT, 2560)
        a(f"""
  s_mul_i32 s{sT2}, s{sJ}, 320
  s_lshl_b32 s{sT3}, s{sH}, 5
  s_add_u32 s{sT2}, s{sT2}, s{sT3}
  v_bfe_u32 v{vO}, v1, 2, 1
  v_mul_u32_u24 v{vO}, 1280, v{vO}
  v_and_b32 v{tmp}, 3, v1
  v_lshl_add_u32 v{vO}, v{tmp}, 3, v{vO}
  v_add_u32 v{vO}, s{sT2}, v{vO}
  buffer_load_dwordx2 {vr(vX,2)}, v{vO}, {srd(SRD_X)}, 0 offen
""")
        for r in range(4):
            a(f"  v_mov_b32 v{R+28+r}, v{vTAG}")
        a(f"  s_mov_b32 s{sSAVE}, 0x00ffffff\n  s_mov_b32 s{sSAVE+1}, 0")
        Lp = self.lab("pollF")
        a.label(Lp)
        for k in range(4):
            a(f"  buffer_load_dwordx4 {vr(R+4*k,4)}, v{vA}, {srd(SRD_WS)}, s{sT0} offen offset:{1024*k} sc1")
        for k in range(4, 7):
            a(f"  buffer_load_dwordx4 {vr(R+4*k,4)}, v{vA}, {srd(SRD_WS)}, s{sT1} offen offset:{1024*(k-4)} sc1")
        a(f"  s_mov_b64 exec, s[{sSAVE}:{sSAVE+1}]")
        a(f"  buffer_load_dwordx4 {vr(R+28,4)}, v{vA}, {srd(SRD_WS)}, s{sT1} offen offset:3072 sc1")
        a("  s_mov_b64 exec, -1")
        a("  s_waitcnt vmcnt(0)")
        self.tagcheck([R+i for i in range(32)], tmp, vTAG)
        self.poll_tail(Lp)
        S, F = R, R+16
        for r in range(4):
            a(f"  v_add_f32 v{S+r}, v{S+r}, v{S+4+r}\n  v_add_f32 v{S+8+r}, v{S+8+r}, v{S+12+r}")
            a(f"  v_add_f32 v{F+r}, v{F+r}, v{F+4+r}\n  v_add_f32 v{F+8+r}, v{F+8+r}, v{F+12+r}")
        for r in range(4):
            a(f"  v_add_f32 v{S+r}, v{S+r}, v{S+8+r}\n  v_add_f32 v{F+r}, v{F+r}, v{F+8+r}")
        regs = [S+i for i in range(4)] + [F+i for i in range(4)]
        self.red(regs, "v_add_f32", tmp, ["r8", "p16", "p32"])
        for r in range(4):
            self.rb(F+r, F+r)
            self.silu(F+r, F+r, tmp+r)
            self.rb(F+r, F+r)
            self.rb(S+r, S+r)
            a(f"  v_mul_f32 v{S+r}, v{S+r}, v{F+r}")
            self.rb(S+r, S+r)
        a(f"  v_lshlrev_b32 v{tmp}, 16, v{vX}\n  v_and_b32 v{tmp+1}, 0xffff0000, v{vX}")
        a(f"  v_lshlrev_b32 v{tmp+2}, 16, v{vX+1}\n  v_and_b32 v{tmp+3}, 0xffff0000, v{vX+1}")
        for r in range(4):
            a(f"  v_add_f32 v{S+r}, v{S+r}, v{tmp+r}")
        a(f"  v_cvt_pk_bf16_f32 v{S}, v{S}, v{S+1}\n  v_cvt_pk_bf16_f32 v{S+1}, v{S+2}, v{S+3}")
        a(f"  s_mov_b64 exec, 0xff")
        a(f"  buffer_store_dwordx2 {vr(S,2)}, v{vO}, {srd(SRD_OUT)}, 0 offen sc1")
        Le = self.lab("noep")
        a(f"  s_or_b32 s{sT0}, s{sH}, s{sJ}\n  s_cmp_eq_u32 s{sT0}, 0\n  s_cbranch_scc0 {Le}")
        a(f"  s_mov_b64 exec, 1\n  v_mov_b32 v{tmp}, 0\n  v_mov_b32 v{tmp+1}, s{sTAG32}")
        a(f"  buffer_store_dword v{tmp+1}, v{tmp}, {srd(SRD_WS)}, 0 offen offset:{WS_EP} sc1")
        a.label(Le)
        a("  s_mov_b64 exec, -1")

    def role_a(self):
        a = self.a
        a.label("L_roleA")
        sHG = sH; sBB = sJ
        vL16, vQK, vPV0, vPV1, vQR, vTAG, vT0, vT1 = 4, 5, 6, 7, 8, 9, 10, 11
        vQL, vQW, vMW, vMR, vPW, vPR, vOP, vSTP = 12, 13, 14, 15, 16, 17, 18, 19
        T = 24
        fQ = 64
        fK, fV = 128, 192
        a(f"""
  s_sub_u32 s{sT0}, s2, 128
  s_lshr_b32 s{sHG}, s{sT0}, 6
  s_lshr_b32 s{sBB}, s{sT0}, 5
  s_and_b32 s{sBB}, s{sBB}, 1
  s_and_b32 s{sSP}, s{sT0}, 31
  s_lshr_b32 s{sFS}, s{sT0}, 2
  s_and_b32 s{sJJ}, s{sT0}, 3
  v_lshlrev_b32 v{vL16}, 4, v1
  s_waitcnt lgkmcnt(0)
""")
        self.ts(0)
        self.mksrd(SRD_X, P_X, 2560)
        self.mksrd(SRD_A, P_CKV, 2*4096*1024)
        self.mksrd(SRD_WS, P_WS, WS_SIZE)
        a(f"  s_load_dword s{sTAG32}, s[{P_WS}:{P_WS+1}], {WS_EP}")
        vx = T
        L1 = self.lab("nox")
        a(f"  s_cmp_lt_u32 s{sW}, 2\n  s_cbranch_scc0 {L1}")
        self.ln_load(vx)
        a.label(L1)
        a(f"""
  s_lshl_b32 s{sT0}, s{sBB}, 12
  s_lshl_b32 s{sT1}, s{sSP}, 7
  s_add_u32 s{sT0}, s{sT0}, s{sT1}
  s_lshl_b32 s{sT1}, s{sW}, 2
  s_add_u32 s{sT0}, s{sT0}, s{sT1}
  s_lshl_b32 s{sT0}, s{sT0}, 10
  s_mul_i32 s{sT1}, s{sW}, {4*CKS}
""")
        for q in range(4):
            for r in range(4):
                a(f"  s_mov_b32 m0, s{sT1}")
                adv = (CKS, 1024) if r < 3 else (29*CKS, 29*1024)
                a(f"  s_add_u32 s{sT1}, s{sT1}, {adv[0]}")
                a(f"  buffer_load_dwordx4 v{vL16}, {srd(SRD_A)}, s{sT0} offen {self.nt_ckv} lds")
                if not (q == 3 and r == 3): a(f"  s_add_u32 s{sT0}, s{sT0}, {adv[1]}")
        a(f"""
  s_waitcnt lgkmcnt(0)
  s_add_u32 s{sTAG32}, s{sTAG32}, 1
  s_and_b32 s{sTAG8}, s{sTAG32}, 0xff
  v_mov_b32 v{vTAG}, s{sTAG8}
""")
        a(f"""
  s_mul_i32 s{sT0}, s{sW}, {16*CKS}
  v_mul_u32_u24 v{vQR}, {CKS}, v2
  v_lshl_add_u32 v{vQR}, v3, 4, v{vQR}
  v_add_u32 v{vQK}, s{sT0}, v{vQR}
  v_add_u32 v{vQR}, {A_Q}, v{vQR}
""")
        a(f"""
  v_lshrrev_b32 v{vT0}, 2, v2
  v_lshl_add_u32 v{vT0}, v3, 2, v{vT0}
  v_mul_u32_u24 v{vPV0}, {CKS}, v{vT0}
  v_and_b32 v{vT0}, 3, v2
  v_lshl_add_u32 v{vPV0}, v{vT0}, 3, v{vPV0}
  s_lshl_b32 s{sT0}, s{sW}, 7
  v_add_u32 v{vPV0}, s{sT0}, v{vPV0}
  v_add_u32 v{vPV1}, {64*CKS}, v{vPV0}
""")
        a(f"""
  s_lshl_b32 s{sT0}, s{sBB}, 5
  s_lshl_b32 s{sT1}, s{sHG}, 4
  s_add_u32 s{sT0}, s{sT0}, s{sT1}
  s_lshl_b32 s{sT1}, s{sW}, 1
  s_add_u32 s{sT0}, s{sT0}, s{sT1}
  s_lshl_b32 s{sT0}, s{sT0}, 10
  s_add_u32 s{sT0}, s{sT0}, {WS_QA}
  v_add_u32 v{vQL}, s{sT0}, v{vL16}
  s_mul_i32 s{sT0}, s{sW}, {2*CKS}
  s_add_u32 s{sT0}, s{sT0}, {A_Q}
  v_add_u32 v{vQW}, s{sT0}, v{vL16}
""")
        a(f"""
  v_lshlrev_b32 v{vMR}, 5, v2
  v_add_u32 v{vMR}, {A_M}, v{vMR}
  s_lshl_b32 s{sT0}, s{sW}, 2
  v_add_u32 v{vMW}, s{sT0}, v{vMR}
  s_lshr_b32 s{sT0}, s{sW}, 1
  s_lshl_b32 s{sT0}, s{sT0}, 10
  s_and_b32 s{sT1}, s{sW}, 1
  s_lshl_b32 s{sT1}, s{sT1}, 3
  s_add_u32 s{sT0}, s{sT0}, s{sT1}
  v_add_u32 v{vPR}, {A_P}, v{vL16}
  v_add_u32 v{vPW}, s{sT0}, v{vPR}
""")
        a(f"""
  s_lshl_b32 s{sT0}, s{sHG}, 6
  s_lshr_b32 s{sT1}, s{sW}, 1
  s_add_u32 s{sT0}, s{sT0}, s{sT1}
  s_mul_i32 s{sT0}, s{sT0}, {OIN_STRIDE}
  s_lshl_b32 s{sT1}, s{sBB}, 5
  s_add_u32 s{sT1}, s{sT1}, s{sSP}
  s_lshl_b32 s{sT2}, s{sT1}, 8
  s_add_u32 s{sT0}, s{sT0}, s{sT2}
  s_and_b32 s{sT2}, s{sW}, 1
  s_lshl_b32 s{sT2}, s{sT2}, 7
  s_add_u32 s{sT0}, s{sT0}, s{sT2}
  s_add_u32 s{sT0}, s{sT0}, {WS_OIN}
  s_mov_b32 s{sT2}, {4*OIN_STRIDE}
  v_mul_lo_u32 v{vOP}, s{sT2}, v2
  v_and_b32 v{vT0}, 1, v3
  v_lshl_add_u32 v{vOP}, v{vT0}, 5, v{vOP}
  v_lshrrev_b32 v{vT0}, 1, v3
  v_lshl_add_u32 v{vOP}, v{vT0}, 4, v{vOP}
  v_add_u32 v{vOP}, s{sT0}, v{vOP}
""")
        a(f"""
  s_lshl_b32 s{sT0}, s{sHG}, 6
  s_mul_i32 s{sT0}, s{sT0}, {OIN_STRIDE}
  s_lshl_b32 s{sT1}, s{sT1}, 3
  s_add_u32 s{sT0}, s{sT0}, s{sT1}
  s_add_u32 s{sT0}, s{sT0}, {WS_OIN + 16384}
  v_lshl_add_u32 v{vT0}, v2, 2, v3
  s_mov_b32 s{sT2}, {OIN_STRIDE}
  v_mul_lo_u32 v{vSTP}, s{sT2}, v{vT0}
  v_add_u32 v{vSTP}, s{sT0}, v{vSTP}
""")
        L5 = self.lab("noln")
        a(f"  s_cmp_lt_u32 s{sW}, 2\n  s_cbranch_scc0 {L5}")
        a("  s_waitcnt vmcnt(16)")
        self.ln_compute(vx, T + 8, A_XN)
        a.label(L5)
        for q in range(4):
            a(f"  s_waitcnt vmcnt({12-4*q}) lgkmcnt(0)\n  s_barrier")
            if q == 0: self.ts(1)
            base = vPV0 if q < 2 else vPV1
            qq = q & 1
            for ct in range(4):
                for u in range(2):
                    r = fV + (ct*4 + q)*4 + 2*u
                    a(f"  ds_read_b64_tr_b16 {vr(r,2)}, v{base} offset:{(32*qq+16*u)*CKS + 32*ct}")
            Lq = self.lab("noqk")
            a(f"  s_lshr_b32 s{sT0}, s{sW}, 1\n  s_cmp_eq_u32 s{sT0}, {q}\n  s_cbranch_scc0 {Lq}")
            for t in range(16):
                a(f"  ds_read_b128 {vr(fK+4*t,4)}, v{vQK} offset:{64*t}")
            a.label(Lq)
        self.ts(2)
        Lp = self.lab("pollCF")
        a(f"  s_lshl_b32 s{sT0}, s{sHG}, 8\n  s_add_u32 s{sT0}, s{sT0}, {WS_CF}\n  v_lshlrev_b32 v{vT0}, 2, v1")
        a.label(Lp)
        a(f"  buffer_load_dword v{T}, v{vT0}, {srd(SRD_WS)}, s{sT0} offen sc1")
        a("  s_waitcnt vmcnt(0)")
        a(f"  v_cmp_ne_u32 vcc, s{sTAG32}, v{T}")
        self.poll_tail(Lp)
        self.ts(3)
        Lp = self.lab("pollQ")
        a.label(Lp)
        a(f"  buffer_load_dwordx4 {vr(T,4)}, v{vQL}, {srd(SRD_WS)}, 0 offen sc1")
        a(f"  buffer_load_dwordx4 {vr(T+4,4)}, v{vQL}, {srd(SRD_WS)}, 0 offen offset:1024 sc1")
        a("  s_waitcnt vmcnt(0)")
        self.markcheck([T+i for i in range(8)], T+8)
        self.poll_tail(Lp)
        a(f"  ds_write_b128 v{vQW}, {vr(T,4)}\n  ds_write_b128 v{vQW}, {vr(T+4,4)} offset:{CKS}")
        a("  s_waitcnt lgkmcnt(0)\n  s_barrier")
        self.ts(4)
        S = T
        for t in range(16):
            a(f"  ds_read_b128 {vr(fQ+4*t,4)}, v{vQR} offset:{64*t}")
        for t in range(16):
            a(f"  s_waitcnt lgkmcnt({min(15-t, 15)})")
            c = "0" if t == 0 else vr(S, 4)
            a(f"  v_mfma_f32_16x16x32_bf16 {vr(S,4)}, {vr(fK+4*t,4)}, {vr(fQ+4*t,4)}, {c}")
        mx, tmp = T+4, T+5
        a(f"  v_max3_f32 v{mx}, v{S}, v{S+1}, v{S+2}\n  v_max_f32 v{mx}, v{mx}, v{S+3}")
        self.red([mx], "v_max_f32", tmp, ["p16", "p32"])
        a(f"  ds_write_b32 v{vMW}, v{mx}")
        a("  s_waitcnt lgkmcnt(0)\n  s_barrier")
        m8 = T + 8
        a(f"  ds_read_b128 {vr(m8,4)}, v{vMR}\n  ds_read_b128 {vr(m8+4,4)}, v{vMR} offset:16")
        a("  s_waitcnt lgkmcnt(0)")
        a(f"  v_max3_f32 v{mx}, v{m8}, v{m8+1}, v{m8+2}\n  v_max3_f32 v{mx}, v{mx}, v{m8+3}, v{m8+4}")
        a(f"  v_max3_f32 v{mx}, v{mx}, v{m8+5}, v{m8+6}\n  v_max_f32 v{mx}, v{mx}, v{m8+7}")
        for r in range(4):
            a(f"  v_sub_f32 v{S+r}, v{S+r}, v{mx}")
        for r in range(4):
            a(f"  v_exp_f32 v{S+r}, v{S+r}")
        pk = T + 6
        a(f"  v_cvt_pk_bf16_f32 v{pk}, v{S}, v{S+1}\n  v_cvt_pk_bf16_f32 v{pk+1}, v{S+2}, v{S+3}")
        a(f"  ds_write_b64 v{vPW}, {vr(pk,2)}")
        ls = T + 16
        a(f"  v_lshlrev_b32 v{S}, 16, v{pk}\n  v_and_b32 v{S+1}, 0xffff0000, v{pk}")
        a(f"  v_lshlrev_b32 v{S+2}, 16, v{pk+1}\n  v_and_b32 v{S+3}, 0xffff0000, v{pk+1}")
        a(f"  v_add_f32 v{ls}, v{S}, v{S+1}\n  v_add_f32 v{S+2}, v{S+2}, v{S+3}\n  v_add_f32 v{ls}, v{ls}, v{S+2}")
        self.red([ls], "v_add_f32", tmp, ["p16", "p32"])
        a(f"  ds_write_b32 v{vMW}, v{ls} offset:{A_L - A_M}")
        a("  s_waitcnt lgkmcnt(0)\n  s_barrier")
        self.ts(5)
        pf = fQ
        for s in range(4):
            a(f"  ds_read_b128 {vr(pf+4*s,4)}, v{vPR} offset:{1024*s}")
        l8 = T + 8
        a(f"  ds_read_b128 {vr(l8,4)}, v{vMR} offset:{A_L - A_M}\n  ds_read_b128 {vr(l8+4,4)}, v{vMR} offset:{A_L - A_M + 16}")
        acc = fQ + 16
        for s in range(4):
            a(f"  s_waitcnt lgkmcnt({5-s})")
            for ct in range(4):
                c = "0" if s == 0 else vr(acc+4*ct, 4)
                a(f"  v_mfma_f32_16x16x32_bf16 {vr(acc+4*ct,4)}, {vr(fV+(ct*4+s)*4,4)}, {vr(pf+4*s,4)}, {c}")
        Ls = self.lab("nostats")
        a("  s_waitcnt lgkmcnt(0)")
        a(f"  s_cmp_eq_u32 s{sW}, 0\n  s_cbranch_scc0 {Ls}")
        a(f"  v_add_f32 v{l8}, v{l8}, v{l8+1}\n  v_add_f32 v{l8+2}, v{l8+2}, v{l8+3}\n  v_add_f32 v{l8+4}, v{l8+4}, v{l8+5}\n  v_add_f32 v{l8+6}, v{l8+6}, v{l8+7}")
        a(f"  v_add_f32 v{l8}, v{l8}, v{l8+2}\n  v_add_f32 v{l8+4}, v{l8+4}, v{l8+6}\n  v_add_f32 v{l8+1}, v{l8}, v{l8+4}")
        a(f"  v_mov_b32 v{l8}, v{mx}")
        a(f"  buffer_store_dwordx2 {vr(l8,2)}, v{vSTP}, {srd(SRD_WS)}, 0 offen sc1")
        a.label(Ls)
        pkd = T + 16
        for pp in range(2):
            for u in range(2):
                ac = acc + 4*(2*pp+u)
                a(f"  v_cvt_pk_bf16_f32 v{pkd+4*pp+2*u}, v{ac}, v{ac+1}\n  v_cvt_pk_bf16_f32 v{pkd+4*pp+2*u+1}, v{ac+2}, v{ac+3}")
        for pp in range(2):
            b0 = pkd + 4*pp
            a(f"  v_permlane16_swap_b32 v{b0}, v{b0+2}\n  v_permlane16_swap_b32 v{b0+1}, v{b0+3}")
        for pp in range(2):
            a(f"  buffer_store_dwordx4 {vr(pkd+4*pp,4)}, v{vOP}, {srd(SRD_WS)}, 0 offen offset:{64*pp} sc1")
        self.ts(6)
        if self.stop == "attn":
            self.ts_flush(); a("  s_endpgm"); return
        Lend = self.lab("noffn")
        a(f"  s_cmp_lt_u32 s{sFS}, 27\n  s_cbranch_scc0 {Lend}")
        self.mksrd(SRD_B, P_W1, 640*3456)
        self.mksrd(SRD_C, P_W2, 1728*1280)
        a("  s_barrier")
        vW1 = T
        a(f"""
  v_lshrrev_b32 v{vT0}, 3, v1
  v_bfe_u32 v{vT1}, v{vT0}, 1, 1
  s_and_b32 s{sT0}, s{sW}, 1
  s_lshl_b32 s{sT0}, s{sT0}, 1
  v_or_b32 v{vT1}, s{sT0}, v{vT1}
  v_lshlrev_b32 v{vT1}, 1, v{vT1}
  v_and_b32 v{vW1}, 7, v1
  v_xor_b32 v{vW1}, v{vW1}, v{vT1}
  v_lshlrev_b32 v{vW1}, 4, v{vW1}
  v_mul_u32_u24 v{vT0}, 3456, v{vT0}
  v_add_u32 v{vW1}, v{vW1}, v{vT0}
  s_mul_i32 s{sT0}, s{sJJ}, {160*3456}
  s_lshl_b32 s{sT1}, s{sFS}, 7
  s_add_u32 s{sT0}, s{sT0}, s{sT1}
  s_mul_i32 s{sT1}, s{sW}, {8*3456}
  s_add_u32 s{sT0}, s{sT0}, s{sT1}
  s_lshl_b32 s{sT1}, s{sW}, 10
  s_add_u32 s{sT1}, s{sT1}, {A_W1}
""")
        Lw = self.lab("w1done")
        for k in range(3):
            if k == 2:
                a(f"  s_cmp_lt_u32 s{sW}, 4\n  s_cbranch_scc0 {Lw}")
            a(f"  s_mov_b32 m0, s{sT1}")
            a(f"  s_add_u32 s{sT1}, s{sT1}, 8192")
            a(f"  buffer_load_dwordx4 v{vW1}, {srd(SRD_B)}, s{sT0} offen {self.nt_w} lds")
            if k < 2: a(f"  s_add_u32 s{sT0}, s{sT0}, {64*3456}")
        a(f"""
  s_lshl_b32 s{sT0}, s{sFS}, 6
  s_lshl_b32 s{sT1}, s{sW}, 4
  s_add_u32 s{sT0}, s{sT0}, s{sT1}
  s_mul_i32 s{sT0}, s{sT0}, 1280
  s_mul_i32 s{sT1}, s{sJJ}, 320
  s_add_u32 s{sT0}, s{sT0}, s{sT1}
  s_mul_i32 s{sT1}, s{sW}, 5120
  s_add_u32 s{sT1}, s{sT1}, {A_W2}
""")
        self.dma_rows320(SRD_C, sT0, sT1, T+1, T+2, T+3, self.nt_w)
        a.label(Lw)
        vX1, vTR1, vP1, vH, vHR, vTR2, vF2 = T+4, T+5, T+6, T+7, T+8, T+9, T+10
        a(f"""
  s_mul_i32 s{sT0}, s{sJJ}, 320
  s_add_u32 s{sT0}, s{sT0}, {A_XN}
  v_and_b32 v{vT0}, 1, v2
  v_mul_u32_u24 v{vX1}, 1280, v{vT0}
  v_lshl_add_u32 v{vX1}, v3, 4, v{vX1}
  v_add_u32 v{vX1}, s{sT0}, v{vX1}
  v_lshrrev_b32 v{vT0}, 2, v2
  v_lshl_add_u32 v{vT1}, v3, 3, v{vT0}
  v_lshlrev_b32 v{vTR1}, 7, v{vT1}
  v_lshrrev_b32 v{vT0}, 1, v{vT0}
  v_and_b32 v{vT1}, 1, v3
  v_lshl_or_b32 v{vT0}, v{vT1}, 1, v{vT0}
  v_lshlrev_b32 v{vT0}, 1, v{vT0}
  v_bfe_u32 v{vT1}, v2, 1, 1
  s_and_b32 s{sT0}, s{sW}, 3
  s_lshl_b32 s{sT0}, s{sT0}, 1
  v_or_b32 v{vT1}, s{sT0}, v{vT1}
  v_xor_b32 v{vT1}, v{vT1}, v{vT0}
  v_lshl_add_u32 v{vTR1}, v{vT1}, 4, v{vTR1}
  v_and_b32 v{vT0}, 1, v2
  v_lshl_add_u32 v{vTR1}, v{vT0}, 3, v{vTR1}
""")
        a(f"""
  s_lshl_b32 s{sT0}, s{sFS}, 2
  s_add_u32 s{sT0}, s{sT0}, s{sJJ}
  s_lshl_b32 s{sT0}, s{sT0}, 9
  s_lshl_b32 s{sT1}, s{sW}, 6
  s_add_u32 s{sT0}, s{sT0}, s{sT1}
  s_add_u32 s{sT0}, s{sT0}, {WS_E5}
  v_and_b32 v{vT0}, 1, v2
  v_lshlrev_b32 v{vP1}, 8, v{vT0}
  v_lshl_add_u32 v{vP1}, v3, 4, v{vP1}
  v_add_u32 v{vP1}, s{sT0}, v{vP1}
  v_mul_u32_u24 v{vHR}, 160, v{vT0}
  v_lshl_add_u32 v{vHR}, v3, 4, v{vHR}
  v_add_u32 v{vHR}, {A_H}, v{vHR}
  v_mul_u32_u24 v{vH}, 160, v3
  v_lshl_add_u32 v{vH}, v2, 3, v{vH}
  v_add_u32 v{vH}, {A_H}, v{vH}
""")
        a(f"""
  v_lshrrev_b32 v{vT0}, 2, v2
  v_lshl_add_u32 v{vT0}, v3, 3, v{vT0}
  v_mul_u32_u24 v{vTR2}, 320, v{vT0}
  v_and_b32 v{vT0}, 3, v2
  v_lshl_add_u32 v{vTR2}, v{vT0}, 3, v{vTR2}
  s_lshl_b32 s{sT0}, s{sW}, 5
  s_add_u32 s{sT0}, s{sT0}, {A_W2}
  v_add_u32 v{vTR2}, s{sT0}, v{vTR2}
  s_mul_i32 s{sT0}, s{sJJ}, 10
  s_add_u32 s{sT0}, s{sT0}, s{sW}
  s_lshl_b32 s{sT0}, s{sT0}, 6
  s_add_u32 s{sT0}, s{sT0}, s{sFS}
  s_add_u32 s{sT0}, s{sT0}, 32
  s_lshl_b32 s{sT0}, s{sT0}, 7
  s_add_u32 s{sT0}, s{sT0}, {WS_FIN}
  v_and_b32 v{vT0}, 1, v2
  v_lshlrev_b32 v{vF2}, 6, v{vT0}
  v_lshl_add_u32 v{vF2}, v3, 4, v{vF2}
  v_add_u32 v{vF2}, s{sT0}, v{vF2}
""")
        a("  s_waitcnt vmcnt(0)\n  s_barrier")
        self.ts(7)
        F = fQ
        L1f = self.lab("noffn1")
        a(f"  s_cmp_lt_u32 s{sW}, 4\n  s_cbranch_scc0 {L1f}")
        xf, af, ac = F, F+20, F+40
        for s in range(5):
            a(f"  ds_read_b128 {vr(xf+4*s,4)}, v{vX1} offset:{64*s}")
            a(f"  ds_read_b64_tr_b16 {vr(af+4*s,2)}, v{vTR1} offset:{A_W1 + 32*s*128}")
            a(f"  ds_read_b64_tr_b16 {vr(af+4*s+2,2)}, v{vTR1} offset:{A_W1 + (32*s+4)*128}")
        for s in range(5):
            a(f"  s_waitcnt lgkmcnt({12-3*s})")
            c = "0" if s == 0 else vr(ac, 4)
            a(f"  v_mfma_f32_16x16x32_bf16 {vr(ac,4)}, {vr(af+4*s,4)}, {vr(xf+4*s,4)}, {c}")
        self.tagpack([ac+i for i in range(4)], vTAG)
        a(f"  s_mov_b64 exec, s[{sM2}:{sM2+1}]")
        a(f"  buffer_store_dwordx4 {vr(ac,4)}, v{vP1}, {srd(SRD_WS)}, 0 offen sc1")
        a("  s_mov_b64 exec, -1")
        a.label(L1f)
        f2a, f2b = F+48, F+56
        for s in range(2):
            a(f"  ds_read_b64_tr_b16 {vr(f2a+4*s,2)}, v{vTR2} offset:{32*s*320}")
            a(f"  ds_read_b64_tr_b16 {vr(f2a+4*s+2,2)}, v{vTR2} offset:{(32*s+4)*320}")
        for s in range(2):
            a(f"  ds_read_b64_tr_b16 {vr(f2b+4*s,2)}, v{vTR2} offset:{32*s*320+256}")
            a(f"  ds_read_b64_tr_b16 {vr(f2b+4*s+2,2)}, v{vTR2} offset:{(32*s+4)*320+256}")
        Lh = self.lab("noh")
        a(f"  s_cmp_eq_u32 s{sW}, 4\n  s_cbranch_scc0 {Lh}")
        a(f"  s_lshl_b32 s{sT0}, s{sFS}, 11\n  s_add_u32 s{sT0}, s{sT0}, {WS_E5}")
        a(f"  s_mov_b64 exec, s[{sM32}:{sM32+1}]")
        Lp = self.lab("pollH")
        a.label(Lp)
        for k in range(4):
            a(f"  buffer_load_dwordx4 {vr(F+4*k,4)}, v{vL16}, {srd(SRD_WS)}, s{sT0} offen offset:{512*k} sc1")
        a("  s_waitcnt vmcnt(0)")
        self.tagcheck([F+i for i in range(16)], F+16, vTAG)
        self.poll_tail(Lp)
        for r in range(4):
            a(f"  v_add_f32 v{F+r}, v{F+r}, v{F+4+r}\n  v_add_f32 v{F+8+r}, v{F+8+r}, v{F+12+r}\n  v_add_f32 v{F+r}, v{F+r}, v{F+8+r}")
            self.rb(F+r, F+r)
            self.silu(F+r, F+r, F+16)
        a(f"  v_cvt_pk_bf16_f32 v{F}, v{F}, v{F+1}\n  v_cvt_pk_bf16_f32 v{F+1}, v{F+2}, v{F+3}")
        a(f"  ds_write_b64 v{vH}, {vr(F,2)}")
        a("  s_mov_b64 exec, -1")
        a.label(Lh)
        a("  s_waitcnt lgkmcnt(0)\n  s_barrier")
        hf, ac, acb = F, F+8, F+12
        for t in range(2):
            a(f"  ds_read_b128 {vr(hf+4*t,4)}, v{vHR} offset:{64*t}")
        for t in range(2):
            a(f"  s_waitcnt lgkmcnt({1-t})")
            c = "0" if t == 0 else vr(ac, 4)
            a(f"  v_mfma_f32_16x16x32_bf16 {vr(ac,4)}, {vr(f2a+4*t,4)}, {vr(hf+4*t,4)}, {c}")
            c = "0" if t == 0 else vr(acb, 4)
            a(f"  v_mfma_f32_16x16x32_bf16 {vr(acb,4)}, {vr(f2b+4*t,4)}, {vr(hf+4*t,4)}, {c}")
        self.tagpack([ac+i for i in range(4)], vTAG)
        self.tagpack([acb+i for i in range(4)], vTAG)
        a(f"  s_mov_b64 exec, s[{sM2}:{sM2+1}]")
        a(f"  buffer_store_dwordx4 {vr(ac,4)}, v{vF2}, {srd(SRD_WS)}, 0 offen sc1")
        L2t = self.lab("no2t")
        a(f"  s_cmp_lt_u32 s{sW}, 2\n  s_cbranch_scc0 {L2t}")
        a(f"  s_mov_b32 s{sT0}, {8*64*128}")
        a(f"  buffer_store_dwordx4 {vr(acb,4)}, v{vF2}, {srd(SRD_WS)}, s{sT0} offen sc1")
        a.label(L2t)
        a("  s_mov_b64 exec, -1")
        self.ts(8)
        a.label(Lend)
        self.ts_flush(0)
        a("  s_endpgm")

    def build(self):
        self.prologue()
        self.role_w()
        self.role_a()
        self.a.label("L_end")
        self.a("  s_endpgm")
        body, n = hazard_pass(self.a.text())
        hdr = open("cdna_kernels/" + NAME + ".s.ref").read().split("\n")
        head = []
        for ln in hdr:
            if ln.startswith("; @launch"):
                head.append(f"; @launch grid=(256,1,1) block=(512,1,1) lds={LDS_BYTES}")
                break
            if ln.startswith("; Override") or ln.startswith("; grid="):
                continue
            head.append(ln)
        txt = "\n".join(head) + "\n"
        txt += f""".amdgcn_target "amdgcn-amd-amdhsa--gfx950"
.text
.globl {NAME}_kernel
.p2align 8
.type {NAME}_kernel,@function
{NAME}_kernel:
{body}
.section .rodata,"a"
.p2align 6
.amdhsa_kernel {NAME}_kernel
  .amdhsa_next_free_vgpr 256
  .amdhsa_next_free_sgpr 102
  .amdhsa_accum_offset 256
  .amdhsa_group_segment_fixed_size 0
  .amdhsa_kernarg_size 96
  .amdhsa_user_sgpr_count 2
  .amdhsa_user_sgpr_kernarg_segment_ptr 1
  .amdhsa_system_sgpr_workgroup_id_x 1
.end_amdhsa_kernel
"""
        return txt

if __name__ == "__main__":
    import argparse
    ap = argparse.ArgumentParser()
    ap.add_argument("-o", default="cdna_kernels/" + NAME + ".s")
    ap.add_argument("--ts", action="store_true")
    ap.add_argument("--stop", default=None)
    ap.add_argument("--tsdbg", action="store_true")
    ap.add_argument("--ntw", default="nt")
    ap.add_argument("--ntc", default="nt")
    args = ap.parse_args()
    g = Gen(ts=args.ts, ts_dbg=args.tsdbg, stop=args.stop, nt_w=args.ntw, nt_ckv=args.ntc)
    t = g.build()
    open(args.o, "w").write(t)
    print("wrote", args.o, len(t), "bytes")
```

```python
import sys, struct
sys.path.insert(0, "gen")
from asmlib import Asm, hazard_pass

NAME = "recurrent_scan__compressed_kv_cla__dense_activation_silu__decode"

def f32(x):
    return "0x%08x" % struct.unpack("<I", struct.pack("<f", x))[0]

WS_EP   = 0x0
WS_CF   = 0x1000
WS_E0   = 0x2000
WS_QA   = 0x30000
WS_E3   = 0x40000
WS_FIN  = 0x60000
WS_E5   = 0xB0000
WS_OIN  = 0x100000
OIN_STRIDE = 16384 + 512
WS_TS   = 0x400000
WS_SIZE = 0x10000000

W_WQ, W_XN, W_XS, W_CL, W_WGT = 0, 40960, 43520, 45824, 46400
W_WUV, W_WO, W_OST = 49152, 81920, 122880
A_CKV, A_Q, A_P, A_M, A_L, A_XN, A_H = 0, 135168, 152064, 156160, 156672, 157184, 159744
A_W1, A_W2 = 0, 20480
CKS = 1056
LDS_BYTES = 163840

P_X, P_CKV, P_WQ, P_WUK, P_WUV, P_WO, P_BX, P_W1, P_W2, P_OUT, P_DBG, P_WS = 4, 6, 8, 10, 12, 14, 16, 18, 20, 22, 24, 26
SRD_X, SRD_A, SRD_B, SRD_C, SRD_D, SRD_WS, SRD_OUT = 28, 32, 36, 40, 44, 48, 52
sW, sH, sJ, sSP, sTAG32, sTAG8, sCNT = 56, 57, 58, 59, 60, 61, 62
sT0, sT1, sT2, sT3, sT4 = 63, 64, 65, 66, 67
sFS, sJJ = 68, 69
sM2, sM32 = 70, 72
sSAVE = 74
sB = 76
sMASKHI = 77
sTS = 80
POLL_LIMIT = 400000

def srd(n): return f"s[{n}:{n+3}]"
def vr(a, n): return f"v[{a}:{a+n-1}]" if n > 1 else f"v{a}"

class Gen:
    def __init__(self, ts=False, nt_w="nt", nt_ckv="nt", stop=None, ts_dbg=False, spin=None):
        self.a = Asm()
        self.ts_on = ts
        self.spin = spin
        self.ts_dbg = ts_dbg
        self.nt_w = nt_w
        self.nt_ckv = nt_ckv
        self.stop = stop
        self.uid = 0

    def lab(self, p):
        self.uid += 1
        return f"L_{p}_{self.uid}"

    def ts(self, k):
        if self.ts_on:
            self.a(f"  s_memrealtime s[{sTS+2*k}:{sTS+2*k+1}]\n  s_waitcnt lgkmcnt(0)")

    def ts_flush(self, wave=0):
        if not self.ts_on: return
        a = self.a
        L = self.lab("tsskip")
        a(f"  s_cmp_eq_u32 s{sW}, {wave}\n  s_cbranch_scc0 {L}")
        a(f"  s_lshl_b32 s{sT0}, s2, 6\n  s_add_u32 s{sT0}, s{sT0}, {WS_TS}")
        a("  s_mov_b64 exec, 1\n  v_mov_b32 v1, 0")
        for k in range(10):
            a(f"  v_mov_b32 v2, s{sTS+2*k}\n  buffer_store_dword v2, v1, {srd(SRD_WS)}, s{sT0} offen offset:{4*k}")
        if self.ts_dbg:
            L2 = self.lab("tsdbg")
            a(f"  s_and_b32 s{sT0}, s2, 127\n  s_cmp_eq_u32 s{sT0}, 0\n  s_cbranch_scc0 {L2}")
            self.mksrd(SRD_OUT, P_DBG, 256)
            a(f"  s_lshr_b32 s{sT0}, s2, 7\n  s_mul_i32 s{sT0}, s{sT0}, 40")
            for k in range(10):
                a(f"  v_mov_b32 v2, s{sTS+2*k}\n  buffer_store_dword v2, v1, {srd(SRD_OUT)}, s{sT0} offen offset:{4*k}")
            a.label(L2)
        a("  s_waitcnt vmcnt(0)")
        a.label(L)

    def mksrd(self, s, ptr, nbytes):
        self.a(f"  s_mov_b32 s{s}, s{ptr}\n  s_mov_b32 s{s+1}, s{ptr+1}\n  s_mov_b32 s{s+2}, {nbytes}\n  s_mov_b32 s{s+3}, 0x00020000")

    def poll_tail(self, loop):
        d = self.lab("pd")
        self.a(f"  s_add_u32 s{sCNT}, s{sCNT}, 1\n  s_cbranch_vccz {d}\n  s_cmp_lt_u32 s{sCNT}, {POLL_LIMIT}\n  s_cbranch_scc1 {loop}")
        self.a.label(d)

    def tagcheck(self, regs, tmp, vtag):
        a = self.a
        f = lambda x, y, z: ((x ^ z) | (y ^ z)) & 0xff
        t1 = f(0xF0, 0xCC, 0xAA)
        g = lambda x, y, z: (x | (y ^ z)) & 0xff
        t2 = g(0xF0, 0xCC, 0xAA)
        a(f"  v_bitop3_b32 v{tmp}, v{regs[0]}, v{regs[1]}, v{vtag} bitop3:{t1:#x}")
        for r in regs[2:]:
            a(f"  v_bitop3_b32 v{tmp}, v{tmp}, v{r}, v{vtag} bitop3:{t2:#x}")
        a(f"  v_and_b32 v{tmp}, 0xff, v{tmp}\n  v_cmp_ne_u32 vcc, 0, v{tmp}")

    def markcheck(self, regs, tmp):
        a = self.a
        a(f"  v_max3_u32 v{tmp}, v{regs[0]}, v{regs[1]}, v{regs[2]}")
        rest = regs[3:]
        while len(rest) >= 2:
            a(f"  v_max3_u32 v{tmp}, v{tmp}, v{rest[0]}, v{rest[1]}")
            rest = rest[2:]
        if rest:
            a(f"  v_max_u32 v{tmp}, v{tmp}, v{rest[0]}")
        a(f"  v_cmp_eq_u32 vcc, -1, v{tmp}")

    def tagpack(self, regs, vtag):
        for r in regs:
            self.a(f"  v_and_or_b32 v{r}, v{r}, s{sMASKHI}, v{vtag}")

    def red(self, regs, op, tmp, steps):
        a = self.a
        for s in steps:
            if s[0] == "r":
                for r in regs:
                    a(f"  {op}_dpp v{r}, v{r}, v{r} row_ror:{s[1:]} row_mask:0xf bank_mask:0xf")
            else:
                for i, r in enumerate(regs):
                    a(f"  v_mov_b32 v{tmp+i}, v{r}")
                for i, r in enumerate(regs):
                    a(f"  v_permlane{s[1:]}_swap_b32 v{r}, v{tmp+i}")
                for i, r in enumerate(regs):
                    a(f"  {op} v{r}, v{r}, v{tmp+i}")

    def rb(self, dst, src):
        self.a(f"  v_cvt_pk_bf16_f32 v{dst}, v{src}, v{src}\n  v_and_b32 v{dst}, 0xffff0000, v{dst}")

    def ln_load(self, vx):
        a = self.a
        a(f"  s_mul_i32 s{sT0}, s{sW}, 1280\n  v_mul_u32_u24 v{vx+5}, 20, v1\n  v_add_u32 v{vx+5}, s{sT0}, v{vx+5}")
        a(f"  buffer_load_dwordx4 {vr(vx,4)}, v{vx+5}, {srd(SRD_X)}, 0 offen\n  buffer_load_dword v{vx+4}, v{vx+5}, {srd(SRD_X)}, 0 offen offset:16")

    def ln_compute(self, vx, e, xn_base):
        a = self.a
        for k in range(5):
            a(f"  v_lshlrev_b32 v{e+2*k}, 16, v{vx+k}\n  v_and_b32 v{e+2*k+1}, 0xffff0000, v{vx+k}")
        s, t, m, mb = e+10, e+11, e+12, e+13
        a(f"  v_add_f32 v{s}, v{e}, v{e+1}")
        for k in range(2, 10):
            a(f"  v_add_f32 v{s}, v{s}, v{e+k}")
        self.red([s], "v_add_f32", t, ["r1", "r2", "r4", "r8", "p16", "p32"])
        a(f"  v_mul_f32 v{m}, {f32(1/640)}, v{s}")
        a(f"  v_mov_b32 v{s}, 0")
        for k in range(10):
            a(f"  v_sub_f32 v{t}, v{e+k}, v{m}\n  v_fmac_f32 v{s}, v{t}, v{t}")
        self.red([s], "v_add_f32", t, ["r1", "r2", "r4", "r8", "p16", "p32"])
        a(f"  v_mul_f32 v{s}, {f32(1/640)}, v{s}")
        self.rb(s, s)
        a(f"  v_add_f32 v{s}, {f32(1e-5)}, v{s}")
        self.rb(s, s)
        a(f"  v_sqrt_f32 v{s}, v{s}")
        self.rb(s, s)
        a(f"  v_rcp_f32 v{s}, v{s}")
        self.rb(mb, m)
        for k in range(5):
            x0, x1 = e+2*k, e+2*k+1
            a(f"  v_sub_f32 v{x0}, v{x0}, v{mb}\n  v_sub_f32 v{x1}, v{x1}, v{mb}")
            a(f"  v_cvt_pk_bf16_f32 v{t}, v{x0}, v{x1}")
            a(f"  v_lshlrev_b32 v{x0}, 16, v{t}\n  v_and_b32 v{x1}, 0xffff0000, v{t}")
            a(f"  v_mul_f32 v{x0}, v{x0}, v{s}\n  v_mul_f32 v{x1}, v{x1}, v{s}")
            a(f"  v_cvt_pk_bf16_f32 v{vx+k}, v{x0}, v{x1}")
        a(f"  v_add_u32 v{t}, {xn_base}, v{vx+5}")
        for k in range(5):
            a(f"  ds_write_b32 v{t}, v{vx+k} offset:{4*k}")

    def prologue(self):
        a = self.a
        a(f"""
  s_cmp_ge_u32 s2, 256
  s_cbranch_scc1 L_end
  s_load_dwordx16 s[4:19], s[0:1], 0
  s_load_dwordx8 s[20:27], s[0:1], 64
  v_lshrrev_b32 v4, 6, v0
  v_and_b32 v1, 63, v0
  v_readfirstlane_b32 s{sW}, v4
  v_and_b32 v2, 15, v0
  v_lshrrev_b32 v3, 4, v1
  s_mov_b32 s{sCNT}, 0
  s_mov_b32 s{sM2}, 0x00030003
  s_mov_b32 s{sM2+1}, 0x00030003
  s_mov_b32 s{sM32}, -1
  s_mov_b32 s{sM32+1}, 0
  s_mov_b32 s{sMASKHI}, 0xffffff00
""")
        self.ts_pre = True
        a("  s_cmp_lt_u32 s2, 128\n  s_cbranch_scc0 L_roleA")

    def role_w(self):
        a = self.a
        vDMA4, vUK, vTR, vXF, vPUB, vPOLL, vXSW, vXSR, vQAP, vTAG, vT0, vT1 = 4, 5, 6, 7, 8, 9, 10, 11, 12, 13, 14, 15
        fUK, fUV, fO0, fO1 = 16, 32, 48, 64
        T = 80
        a(f"""
  s_and_b32 s{sH}, s2, 7
  s_lshr_b32 s{sT0}, s2, 5
  s_lshl_b32 s{sT0}, s{sT0}, 3
  s_or_b32 s{sH}, s{sH}, s{sT0}
  s_lshr_b32 s{sJ}, s2, 3
  s_and_b32 s{sJ}, s{sJ}, 3
""")
        a(f"""
  s_lshr_b32 s{sT0}, s{sW}, 1
  s_and_b32 s{sT0}, s{sT0}, 1
  s_lshl_b32 s{sT0}, s{sT0}, 2
  v_or_b32 v{vT0}, s{sT0}, v3
  v_lshlrev_b32 v{vT0}, 1, v{vT0}
  v_xor_b32 v{vT0}, v{vT0}, v2
  v_lshlrev_b32 v{vT0}, 4, v{vT0}
  v_lshl_add_u32 v{vDMA4}, v3, 13, v{vT0}
  s_waitcnt lgkmcnt(0)
""")
        self.ts(0)
        self.mksrd(SRD_X, P_X, 2560)
        self.mksrd(SRD_A, P_WQ, 640*8192)
        self.mksrd(SRD_WS, P_WS, WS_SIZE)
        a(f"  s_load_dword s{sTAG32}, s[{P_WS}:{P_WS+1}], {WS_EP}")
        vx = T
        L1 = self.lab("nox")
        a(f"  s_cmp_lt_u32 s{sW}, 2\n  s_cbranch_scc0 {L1}")
        self.ln_load(vx)
        a.label(L1)
        vM1 = T + 8
        a(f"  v_mov_b32 v{vM1}, -1\n  v_mov_b32 v{vM1+1}, -1\n  v_mov_b32 v{vM1+2}, -1\n  v_mov_b32 v{vM1+3}, -1")
        L2 = self.lab("noclean")
        a(f"  s_cmp_eq_u32 s{sW}, 7\n  s_cbranch_scc0 {L2}")
        a(f"""
  s_lshl_b32 s{sT0}, s{sH}, 10
  s_lshl_b32 s{sT1}, s{sJ}, 8
  s_add_u32 s{sT0}, s{sT0}, s{sT1}
  s_add_u32 s{sT0}, s{sT0}, {WS_QA}
  v_lshlrev_b32 v{vT0}, 15, v3
  v_lshl_add_u32 v{vT0}, v2, 4, v{vT0}
  s_mov_b64 exec, s[{sM32}:{sM32+1}]
  buffer_store_dwordx4 {vr(vM1,4)}, v{vT0}, {srd(SRD_WS)}, s{sT0} offen sc1
  s_mov_b64 exec, -1
""")
        a.label(L2)
        a(f"""
  s_mul_i32 s{sT0}, s{sJ}, {160*8192}
  s_lshl_b32 s{sT1}, s{sH}, 8
  s_add_u32 s{sT0}, s{sT0}, s{sT1}
  s_lshl_b32 s{sT1}, s{sW}, 15
  s_add_u32 s{sT0}, s{sT0}, s{sT1}
  s_lshl_b32 s{sT1}, s{sW}, 10
  s_add_u32 s{sT1}, s{sT1}, {W_WQ}
""")
        for k in range(5):
            a(f"  s_mov_b32 m0, s{sT1}")
            a(f"  s_add_u32 s{sT1}, s{sT1}, 8192")
            a(f"  buffer_load_dwordx4 v{vDMA4}, {srd(SRD_A)}, s{sT0} offen {self.nt_w} lds")
            if k < 4: a(f"  s_add_u32 s{sT0}, s{sT0}, {32*8192}")
        self.mksrd(SRD_B, P_WUK, 512*8192)
        a(f"""
  s_lshl_b32 s{sT0}, s{sJ}, 7
  s_lshl_b32 s{sT1}, s{sW}, 4
  s_add_u32 s{sT0}, s{sT0}, s{sT1}
  s_lshl_b32 s{sT0}, s{sT0}, 13
  s_lshl_b32 s{sT1}, s{sH}, 8
  s_add_u32 s{sT0}, s{sT0}, s{sT1}
  v_lshlrev_b32 v{vUK}, 13, v2
  v_lshl_add_u32 v{vUK}, v3, 4, v{vUK}
""")
        for t in range(4):
            a(f"  buffer_load_dwordx4 {vr(fUK+4*t,4)}, v{vUK}, {srd(SRD_B)}, s{sT0} offen offset:{64*t} {self.nt_w}")
        a(f"""
  s_lshl_b32 s{sT0}, s{sH}, 2
  s_add_u32 s{sT0}, s{sT0}, s{sJ}
  s_mul_i32 s{sT4}, s{sT0}, {OIN_STRIDE}
  s_add_u32 s{sT4}, s{sT4}, {WS_OIN}
  s_lshl_b32 s{sT0}, s{sW}, 11
  s_add_u32 s{sT0}, s{sT0}, s{sT4}
  v_lshlrev_b32 v{vT0}, 4, v1
  buffer_store_dwordx4 {vr(vM1,4)}, v{vT0}, {srd(SRD_WS)}, s{sT0} offen sc1
  buffer_store_dwordx4 {vr(vM1,4)}, v{vT0}, {srd(SRD_WS)}, s{sT0} offen offset:1024 sc1
""")
        sOIN = 78
        a(f"  s_mov_b32 s{sOIN}, s{sT4}")
        L3 = self.lab("nostat")
        a(f"  s_cmp_eq_u32 s{sW}, 0\n  s_cbranch_scc0 {L3}")
        a(f"""
  s_add_u32 s{sT0}, s{sOIN}, 16384
  s_mov_b64 exec, s[{sM32}:{sM32+1}]
  buffer_store_dwordx4 {vr(vM1,4)}, v{vT0}, {srd(SRD_WS)}, s{sT0} offen sc1
  s_mov_b64 exec, -1
""")
        a.label(L3)
        a(f"""
  s_waitcnt lgkmcnt(0)
  s_add_u32 s{sTAG32}, s{sTAG32}, 1
  s_and_b32 s{sTAG8}, s{sTAG32}, 0xff
  v_mov_b32 v{vTAG}, s{sTAG8}
""")
        L4 = self.lab("nocf")
        a(f"  s_cmp_eq_u32 s{sW}, 7\n  s_cbranch_scc0 {L4}")
        a(f"""
  s_lshl_b32 s{sT0}, s{sH}, 2
  s_add_u32 s{sT0}, s{sT0}, s{sJ}
  s_lshl_b32 s{sT0}, s{sT0}, 2
  s_add_u32 s{sT0}, s{sT0}, {WS_CF}
  v_mov_b32 v{vT0}, 0
  v_mov_b32 v{vT1}, s{sTAG32}
  s_mov_b64 exec, 1
  s_waitcnt vmcnt(11)
  buffer_store_dword v{vT1}, v{vT0}, {srd(SRD_WS)}, s{sT0} offen sc1
  s_mov_b64 exec, -1
""")
        a.label(L4)
        a(f"""
  v_lshrrev_b32 v{vT0}, 2, v2
  v_and_b32 v{vT1}, 1, v3
  v_lshl_or_b32 v{vT1}, v{vT1}, 2, v{vT0}
  v_lshlrev_b32 v{vT1}, 1, v{vT1}
  v_lshl_add_u32 v{vT0}, v3, 3, v{vT0}
  v_lshlrev_b32 v{vTR}, 8, v{vT0}
  v_bfe_u32 v{vT0}, v2, 1, 1
  s_lshl_b32 s{sT0}, s{sW}, 1
  v_or_b32 v{vT0}, s{sT0}, v{vT0}
  v_xor_b32 v{vT0}, v{vT0}, v{vT1}
  v_lshl_add_u32 v{vTR}, v{vT0}, 4, v{vTR}
  v_and_b32 v{vT0}, 1, v2
  v_lshl_add_u32 v{vTR}, v{vT0}, 3, v{vTR}
""")
        a(f"""
  s_mul_i32 s{sT0}, s{sJ}, 320
  s_add_u32 s{sT0}, s{sT0}, {W_XN}
  v_and_b32 v{vT0}, 1, v2
  v_mul_u32_u24 v{vXF}, 1280, v{vT0}
  v_lshl_add_u32 v{vXF}, v3, 4, v{vXF}
  v_add_u32 v{vXF}, s{sT0}, v{vXF}
""")
        a(f"""
  s_lshl_b32 s{sT0}, s{sH}, 2
  s_add_u32 s{sT0}, s{sT0}, s{sJ}
  s_lshl_b32 s{sT0}, s{sT0}, 10
  s_lshl_b32 s{sT1}, s{sW}, 6
  s_add_u32 s{sT0}, s{sT0}, s{sT1}
  v_and_b32 v{vT0}, 1, v2
  v_lshlrev_b32 v{vPUB}, 9, v{vT0}
  v_lshl_add_u32 v{vPUB}, v3, 4, v{vPUB}
  v_add_u32 v{vPUB}, s{sT0}, v{vPUB}
""")
        a(f"""
  s_lshl_b32 s{sT0}, s{sH}, 3
  s_add_u32 s{sT0}, s{sT0}, s{sW}
  s_lshl_b32 s{sT0}, s{sT0}, 9
  v_lshlrev_b32 v{vPOLL}, 4, v1
  v_add_u32 v{vPOLL}, s{sT0}, v{vPOLL}
  s_mul_i32 s{sT0}, s{sW}, 288
  s_add_u32 s{sT0}, s{sT0}, {W_XS}
  v_lshlrev_b32 v{vXSW}, 3, v1
  v_add_u32 v{vXSW}, s{sT0}, v{vXSW}
  v_and_b32 v{vT0}, 7, v2
  v_mul_u32_u24 v{vXSR}, 288, v{vT0}
  v_lshl_add_u32 v{vXSR}, v3, 4, v{vXSR}
  v_add_u32 v{vXSR}, {W_XS}, v{vXSR}
""")
        a(f"""
  s_lshl_b32 s{sT0}, s{sH}, 10
  s_lshl_b32 s{sT1}, s{sJ}, 8
  s_add_u32 s{sT0}, s{sT0}, s{sT1}
  s_lshl_b32 s{sT1}, s{sW}, 5
  s_add_u32 s{sT0}, s{sT0}, s{sT1}
  s_add_u32 s{sT0}, s{sT0}, {WS_QA}
  v_and_b32 v{vT0}, 1, v2
  v_lshlrev_b32 v{vQAP}, 15, v{vT0}
  v_lshl_add_u32 v{vQAP}, v3, 3, v{vQAP}
  v_add_u32 v{vQAP}, s{sT0}, v{vQAP}
""")
        L5 = self.lab("noln")
        a(f"  s_cmp_lt_u32 s{sW}, 2\n  s_cbranch_scc0 {L5}")
        a("  s_waitcnt vmcnt(11)")
        self.ln_compute(vx, T + 16, W_XN)
        a.label(L5)
        a("  s_waitcnt vmcnt(6) lgkmcnt(0)\n  s_barrier")
        self.ts(1)
        xf, af, acc = T, T + 20, T + 40
        for s in range(5):
            a(f"  ds_read_b128 {vr(xf+4*s,4)}, v{vXF} offset:{64*s}")
            a(f"  ds_read_b64_tr_b16 {vr(af+4*s,2)}, v{vTR} offset:{W_WQ + 8192*s}")
            a(f"  ds_read_b64_tr_b16 {vr(af+4*s+2,2)}, v{vTR} offset:{W_WQ + 8192*s + 1024}")
        for s in range(5):
            a(f"  s_waitcnt lgkmcnt({12-3*s})")
            c = "0" if s == 0 else vr(acc, 4)
            a(f"  v_mfma_f32_16x16x32_bf16 {vr(acc,4)}, {vr(af+4*s,4)}, {vr(xf+4*s,4)}, {c}")
        sE0, sE3 = sT2, sT3
        a(f"  s_mov_b32 s{sE0}, {WS_E0}")
        self.publish_part(acc, vPUB, vTAG, sE0)
        self.ts(2)
        self.consume_part(vPOLL, vXSW, vTAG, sE0, T)
        self.ts(3)
        xr = T + 8
        for t in range(4):
            a(f"  ds_read_b128 {vr(xr+4*t,4)}, v{vXSR} offset:{64*t}")
        for t in range(4):
            a(f"  s_waitcnt lgkmcnt({3-t})")
            c = "0" if t == 0 else vr(acc, 4)
            a(f"  v_mfma_f32_16x16x32_bf16 {vr(acc,4)}, {vr(fUK+4*t,4)}, {vr(xr+4*t,4)}, {c}")
        self.red([acc, acc+1, acc+2, acc+3], "v_add_f32", T, ["r2", "r4"])
        sc = 128**-0.5 * 1.4426950408889634
        a(f"  s_mov_b32 s{sT0}, {f32(sc)}")
        for r in range(4):
            a(f"  v_mul_f32 v{acc+r}, s{sT0}, v{acc+r}")
        a(f"  v_cvt_pk_bf16_f32 v{acc}, v{acc}, v{acc+1}\n  v_cvt_pk_bf16_f32 v{acc+1}, v{acc+2}, v{acc+3}")
        a(f"  s_mov_b64 exec, s[{sM2}:{sM2+1}]")
        a(f"  buffer_store_dwordx2 {vr(acc,2)}, v{vQAP}, {srd(SRD_WS)}, 0 offen sc1")
        a("  s_mov_b64 exec, -1")
        self.ts(4)
        if self.stop == "p1":
            self.ts_flush(); a("  s_endpgm"); return
        self.mksrd(SRD_C, P_WUV, 512*8192)
        self.mksrd(SRD_D, P_WO, 32*163840)
        a(f"""
  s_lshl_b32 s{sT0}, s{sJ}, 20
  s_lshl_b32 s{sT1}, s{sH}, 8
  s_add_u32 s{sT0}, s{sT0}, s{sT1}
  s_lshl_b32 s{sT1}, s{sW}, 15
  s_add_u32 s{sT0}, s{sT0}, s{sT1}
  s_lshl_b32 s{sT1}, s{sW}, 10
  s_add_u32 s{sT1}, s{sT1}, {W_WUV}
""")
        for k in range(4):
            a(f"  s_mov_b32 m0, s{sT1}")
            a(f"  s_add_u32 s{sT1}, s{sT1}, 8192")
            a(f"  buffer_load_dwordx4 v{vDMA4}, {srd(SRD_C)}, s{sT0} offen {self.nt_w} lds")
            if k < 3: a(f"  s_add_u32 s{sT0}, s{sT0}, {32*8192}")
        a(f"""
  s_mul_i32 s{sT0}, s{sH}, 163840
  s_mul_i32 s{sT1}, s{sW}, {16*1280}
  s_add_u32 s{sT0}, s{sT0}, s{sT1}
  s_mul_i32 s{sT1}, s{sJ}, 320
  s_add_u32 s{sT0}, s{sT0}, s{sT1}
  s_mul_i32 s{sT1}, s{sW}, 5120
  s_add_u32 s{sT1}, s{sT1}, {W_WO}
""")
        self.dma_rows320(SRD_D, sT0, sT1, T, T+1, T+2, self.nt_w)
        vTRV, vTRO, vOL, vOW, vSTL, vOTR, vWGW, vWGR, vCLW, vCLR, vFINP = T+40, T+41, T+42, T+43, T+44, T+45, T+46, T+47, T+48, T+49, T+50
        a(f"  v_add_u32 v{vTRV}, {W_WUV}, v{vTR}")
        a(f"""
  v_lshrrev_b32 v{vT0}, 2, v2
  v_lshl_add_u32 v{vT0}, v3, 3, v{vT0}
  v_mul_u32_u24 v{vTRO}, 320, v{vT0}
  v_and_b32 v{vT0}, 3, v2
  v_lshl_add_u32 v{vTRO}, v{vT0}, 3, v{vTRO}
  s_lshl_b32 s{sT0}, s{sW}, 5
  s_add_u32 s{sT0}, s{sT0}, {W_WO}
  v_add_u32 v{vTRO}, s{sT0}, v{vTRO}
""")
        a(f"""
  s_lshl_b32 s{sT0}, s{sW}, 3
  v_add_u32 v{vT0}, s{sT0}, v3
  v_lshlrev_b32 v{vOL}, 8, v{vT0}
  v_lshl_add_u32 v{vOL}, v2, 4, v{vOL}
  v_mul_u32_u24 v{vOW}, 288, v{vT0}
  v_lshl_add_u32 v{vOW}, v2, 4, v{vOW}
  v_add_u32 v{vOW}, {W_OST}, v{vOW}
  v_lshlrev_b32 v{vSTL}, 3, v1
  v_add_u32 v{vSTL}, 16384, v{vSTL}
""")
        a(f"""
  v_lshrrev_b32 v{vT0}, 2, v2
  v_lshl_add_u32 v{vT0}, v3, 2, v{vT0}
  v_mul_u32_u24 v{vOTR}, 288, v{vT0}
  v_and_b32 v{vT0}, 3, v2
  v_lshl_add_u32 v{vOTR}, v{vT0}, 3, v{vOTR}
  s_lshl_b32 s{sT0}, s{sW}, 5
  s_add_u32 s{sT0}, s{sT0}, {W_OST}
  v_add_u32 v{vOTR}, s{sT0}, v{vOTR}
""")
        a(f"""
  v_lshrrev_b32 v{vT0}, 5, v1
  v_lshlrev_b32 v{vWGW}, 6, v{vT0}
  v_bfe_u32 v{vT0}, v1, 2, 2
  v_lshl_add_u32 v{vWGW}, v{vT0}, 4, v{vWGW}
  v_bfe_u32 v{vT0}, v1, 4, 1
  v_lshl_add_u32 v{vWGW}, v{vT0}, 3, v{vWGW}
  v_and_b32 v{vT0}, 3, v1
  v_lshl_add_u32 v{vWGW}, v{vT0}, 1, v{vWGW}
  s_lshl_b32 s{sT0}, s{sW}, 8
  s_add_u32 s{sT0}, s{sT0}, {W_WGT}
  v_add_u32 v{vWGW}, s{sT0}, v{vWGW}
  v_and_b32 v{vT0}, 1, v2
  v_lshlrev_b32 v{vWGR}, 7, v{vT0}
  v_lshl_add_u32 v{vWGR}, v3, 4, v{vWGR}
  v_add_u32 v{vWGR}, s{sT0}, v{vWGR}
""")
        a(f"""
  v_and_b32 v{vT0}, 1, v2
  v_mul_u32_u24 v{vCLR}, 288, v{vT0}
  v_add_u32 v{vCLR}, {W_CL}, v{vCLR}
  s_lshl_b32 s{sT0}, s{sW}, 5
  v_lshl_add_u32 v{vCLW}, v3, 3, v{vCLR}
  v_add_u32 v{vCLW}, s{sT0}, v{vCLW}
  v_lshl_add_u32 v{vCLR}, v3, 4, v{vCLR}
""")
        a(f"""
  s_mul_i32 s{sT0}, s{sJ}, 10
  s_add_u32 s{sT0}, s{sT0}, s{sW}
  s_lshl_b32 s{sT0}, s{sT0}, 6
  s_add_u32 s{sT0}, s{sT0}, s{sH}
  s_lshl_b32 s{sT0}, s{sT0}, 7
  s_add_u32 s{sT0}, s{sT0}, {WS_FIN}
  v_and_b32 v{vT0}, 1, v2
  v_lshlrev_b32 v{vFINP}, 6, v{vT0}
  v_lshl_add_u32 v{vFINP}, v3, 4, v{vFINP}
  v_add_u32 v{vFINP}, s{sT0}, v{vFINP}
""")
        a("  s_waitcnt vmcnt(0)\n  s_barrier")
        for s in range(4):
            a(f"  ds_read_b64_tr_b16 {vr(fUV+4*s,2)}, v{vTRV} offset:{8192*s}")
            a(f"  ds_read_b64_tr_b16 {vr(fUV+4*s+2,2)}, v{vTRV} offset:{8192*s+1024}")
        for s in range(4):
            a(f"  ds_read_b64_tr_b16 {vr(fO0+4*s,2)}, v{vTRO} offset:{32*s*320}")
            a(f"  ds_read_b64_tr_b16 {vr(fO0+4*s+2,2)}, v{vTRO} offset:{(32*s+4)*320}")
        L6 = self.lab("no2tile")
        a(f"  s_cmp_lt_u32 s{sW}, 2\n  s_cbranch_scc0 {L6}")
        for s in range(4):
            a(f"  ds_read_b64_tr_b16 {vr(fO1+4*s,2)}, v{vTRO} offset:{32*s*320 + 256}")
            a(f"  ds_read_b64_tr_b16 {vr(fO1+4*s+2,2)}, v{vTRO} offset:{(32*s+4)*320 + 256}")
        a.label(L6)
        a("  s_waitcnt lgkmcnt(0)")
        self.ts(5)
        o0, o1, st = T, T+4, T+8
        Lp = self.lab("pollO")
        a.label(Lp)
        a(f"  buffer_load_dwordx2 {vr(st,2)}, v{vSTL}, {srd(SRD_WS)}, s{sOIN} offen sc1")
        a(f"  buffer_load_dwordx4 {vr(o0,4)}, v{vOL}, {srd(SRD_WS)}, s{sOIN} offen sc1")
        a(f"  buffer_load_dwordx4 {vr(o1,4)}, v{vOL}, {srd(SRD_WS)}, s{sOIN} offen offset:1024 sc1")
        a("  s_waitcnt vmcnt(0)")
        self.markcheck([o0+i for i in range(8)] + [st, st+1], T+10)
        self.poll_tail(Lp)
        self.ts(6)
        a(f"  ds_write_b128 v{vOW}, {vr(o0,4)}\n  ds_write_b128 v{vOW}, {vr(o1,4)} offset:{4*288}")
        mx, wv, tmp = T+10, T+11, T+12
        a(f"  v_mov_b32 v{mx}, v{st}")
        self.red([mx], "v_max_f32", tmp, ["r1", "r2", "r4", "r8", "p16"])
        a(f"  v_sub_f32 v{wv}, v{st}, v{mx}\n  v_exp_f32 v{wv}, v{wv}")
        a(f"  v_cvt_pk_bf16_f32 v{tmp}, v{wv}, v{wv}")
        a(f"  v_mov_b32 v{tmp+1}, 0")
        a(f"  v_lshrrev_b32 v{tmp+2}, 5, v1\n  v_lshlrev_b32 v{tmp+2}, 7, v{tmp+2}")
        a(f"  v_add_u32 v{tmp+3}, v{vWGW}, v{tmp+2}")
        a(f"  v_xor_b32 v{tmp+2}, 128, v{tmp+2}\n  v_add_u32 v{tmp+2}, v{vWGW}, v{tmp+2}")
        a(f"  ds_write_b16 v{tmp+3}, v{tmp}\n  ds_write_b16 v{tmp+2}, v{tmp+1}")
        a(f"  v_and_b32 v{wv}, 0xffff0000, v{tmp}\n  v_mul_f32 v{wv}, v{wv}, v{st+1}")
        a("  s_waitcnt lgkmcnt(0)\n  s_barrier")
        ot, wf = T+16, T+24
        for s in range(2):
            a(f"  ds_read_b64_tr_b16 {vr(ot+4*s,2)}, v{vOTR} offset:{32*s*288}")
            a(f"  ds_read_b64_tr_b16 {vr(ot+4*s+2,2)}, v{vOTR} offset:{(32*s+16)*288}")
            a(f"  ds_read_b128 {vr(wf+4*s,4)}, v{vWGR} offset:{64*s}")
        self.red([wv], "v_add_f32", tmp, ["r1", "r2", "r4", "r8", "p16"])
        a(f"  v_rcp_f32 v{wv}, v{wv}")
        a(f"  s_nop 0\n  v_readlane_b32 s{sT0}, v{wv}, 0\n  v_readlane_b32 s{sT1}, v{wv}, 32")
        a(f"  v_and_b32 v{tmp}, 1, v2\n  v_cmp_eq_u32 vcc, 0, v{tmp}")
        a(f"  v_mov_b32 v{tmp}, s{sT1}\n  v_mov_b32 v{tmp+1}, s{sT0}\n  v_cndmask_b32 v{tmp}, v{tmp}, v{tmp+1}, vcc")
        acc2 = T + 32
        a("  s_waitcnt lgkmcnt(3)")
        a(f"  v_mfma_f32_16x16x32_bf16 {vr(acc2,4)}, {vr(ot,4)}, {vr(wf,4)}, 0")
        a("  s_waitcnt lgkmcnt(0)")
        a(f"  v_mfma_f32_16x16x32_bf16 {vr(acc2,4)}, {vr(ot+4,4)}, {vr(wf+4,4)}, {vr(acc2,4)}")
        for r in range(4):
            a(f"  v_mul_f32 v{acc2+r}, v{acc2+r}, v{tmp}")
        a(f"  v_cvt_pk_bf16_f32 v{acc2}, v{acc2}, v{acc2+1}\n  v_cvt_pk_bf16_f32 v{acc2+1}, v{acc2+2}, v{acc2+3}")
        a(f"  ds_write_b64 v{vCLW}, {vr(acc2,2)}")
        a("  s_waitcnt lgkmcnt(0)\n  s_barrier")
        cf = T + 16
        for t in range(4):
            a(f"  ds_read_b128 {vr(cf+4*t,4)}, v{vCLR} offset:{64*t}")
        for t in range(4):
            a(f"  s_waitcnt lgkmcnt({3-t})")
            c = "0" if t == 0 else vr(acc2, 4)
            a(f"  v_mfma_f32_16x16x32_bf16 {vr(acc2,4)}, {vr(fUV+4*t,4)}, {vr(cf+4*t,4)}, {c}")
        a(f"  s_mov_b32 s{sE3}, {WS_E3}")
        self.publish_part(acc2, vPUB, vTAG, sE3)
        self.ts(7)
        self.consume_part(vPOLL, vXSW, vTAG, sE3, T)
        xr = T + 8
        for t in range(4):
            a(f"  ds_read_b128 {vr(xr+4*t,4)}, v{vXSR} offset:{64*t}")
        accB = T + 36
        for t in range(4):
            a(f"  s_waitcnt lgkmcnt({3-t})")
            c = "0" if t == 0 else vr(acc2, 4)
            a(f"  v_mfma_f32_16x16x32_bf16 {vr(acc2,4)}, {vr(fO0+4*t,4)}, {vr(xr+4*t,4)}, {c}")
        L7 = self.lab("no2b")
        a(f"  s_cmp_lt_u32 s{sW}, 2\n  s_cbranch_scc0 {L7}")
        for t in range(4):
            c = "0" if t == 0 else vr(accB, 4)
            a(f"  v_mfma_f32_16x16x32_bf16 {vr(accB,4)}, {vr(fO1+4*t,4)}, {vr(xr+4*t,4)}, {c}")
        self.red([accB+i for i in range(4)], "v_add_f32", T, ["r2", "r4"])
        self.tagpack([accB+i for i in range(4)], vTAG)
        a(f"  s_mov_b32 s{sT0}, {8*64*128}")
        a(f"  s_mov_b64 exec, s[{sM2}:{sM2+1}]")
        a(f"  buffer_store_dwordx4 {vr(accB,4)}, v{vFINP}, {srd(SRD_WS)}, s{sT0} offen sc1")
        a("  s_mov_b64 exec, -1")
        a.label(L7)
        self.red([acc2+i for i in range(4)], "v_add_f32", T, ["r2", "r4"])
        self.tagpack([acc2+i for i in range(4)], vTAG)
        a(f"  s_mov_b64 exec, s[{sM2}:{sM2+1}]")
        a(f"  buffer_store_dwordx4 {vr(acc2,4)}, v{vFINP}, {srd(SRD_WS)}, 0 offen sc1")
        a("  s_mov_b64 exec, -1")
        self.ts(8)
        Lf = self.lab("nofinal")
        a(f"  s_cmp_lt_u32 s{sH}, 10\n  s_cbranch_scc0 {Lf}")
        a(f"  s_cmp_eq_u32 s{sW}, 7\n  s_cbranch_scc0 {Lf}")
        self.final(T, vTAG)
        a.label(Lf)
        self.ts(9)
        if self.spin is not None:
            Ls, Le = self.lab("spin"), self.lab("spinend")
            a(f"  s_cmp_eq_u32 s2, 0\n  s_cbranch_scc0 {Le}\n  s_cmp_eq_u32 s{sW}, 7\n  s_cbranch_scc0 {Le}")
            a(f"  s_sub_u32 s{sT0}, s{sTS+2*self.spin}, s{sTS}")
            a.label(Ls)
            a(f"  s_memrealtime s[{sSAVE}:{sSAVE+1}]\n  s_waitcnt lgkmcnt(0)\n  s_sub_u32 s{sT1}, s{sSAVE}, s{sTS+18}\n  s_cmp_lt_u32 s{sT1}, s{sT0}\n  s_cbranch_scc1 {Ls}")
            a.label(Le)
        self.ts_flush(7)
        a("  s_endpgm")

    def dma_rows320(self, S, sOFF, sLDS, vq, vr_, vo, nt):
        a = self.a
        for k in range(5):
            a(f"  v_add_u32 v{vq}, {64*k}, v1")
            a(f"  v_mul_u32_u24 v{vr_}, 3277, v{vq}\n  v_lshrrev_b32 v{vr_}, 16, v{vr_}")
            a(f"  v_mul_u32_u24 v{vo}, 20, v{vr_}\n  v_sub_u32 v{vq}, v{vq}, v{vo}")
            a(f"  v_mul_u32_u24 v{vo}, 1280, v{vr_}\n  v_lshl_add_u32 v{vo}, v{vq}, 4, v{vo}")
            a(f"  s_mov_b32 m0, s{sLDS}")
            a(f"  s_add_u32 s{sLDS}, s{sLDS}, 1024")
            a(f"  buffer_load_dwordx4 v{vo}, {srd(S)}, s{sOFF} offen {nt} lds")

    def publish_part(self, acc, vPUB, vTAG, sBase):
        a = self.a
        self.tagpack([acc+i for i in range(4)], vTAG)
        a(f"  s_mov_b64 exec, s[{sM2}:{sM2+1}]")
        a(f"  buffer_store_dwordx4 {vr(acc,4)}, v{vPUB}, {srd(SRD_WS)}, s{sBase} offen sc1")
        a("  s_mov_b64 exec, -1")

    def consume_part(self, vPOLL, vXSW, vTAG, sBase, T):
        a = self.a
        Lp = self.lab("pollp")
        a(f"  s_mov_b64 exec, s[{sM32}:{sM32+1}]")
        a.label(Lp)
        a(f"  buffer_load_dwordx4 {vr(T,4)}, v{vPOLL}, {srd(SRD_WS)}, s{sBase} offen sc1")
        a("  s_waitcnt vmcnt(0)")
        self.tagcheck([T, T+1, T+2, T+3], T+4, vTAG)
        self.poll_tail(Lp)
        a(f"  v_cvt_pk_bf16_f32 v{T}, v{T}, v{T+1}\n  v_cvt_pk_bf16_f32 v{T+1}, v{T+2}, v{T+3}")
        a(f"  ds_write_b64 v{vXSW}, {vr(T,2)}")
        a("  s_mov_b64 exec, -1")
        a("  s_waitcnt lgkmcnt(0)\n  s_barrier")

    def silu(self, dst, src, tmp):
        a = self.a
        a(f"  v_mul_f32 v{tmp}, {f32(-1.4426950408889634)}, v{src}\n  v_exp_f32 v{tmp}, v{tmp}")
        a(f"  v_add_f32 v{tmp}, 1.0, v{tmp}\n  v_rcp_f32 v{tmp}, v{tmp}")
        a(f"  v_mul_f32 v{dst}, v{src}, v{tmp}")

    def final(self, T, vTAG):
        a = self.a
        R = T
        vA, vX, vO, tmp = T+32, T+34, T+36, T+40
        a(f"""
  s_mul_i32 s{sT0}, s{sJ}, 10
  s_add_u32 s{sT0}, s{sT0}, s{sH}
  s_lshl_b32 s{sT0}, s{sT0}, 13
  s_add_u32 s{sT0}, s{sT0}, {WS_FIN}
  s_add_u32 s{sT1}, s{sT0}, 4096
  v_lshlrev_b32 v{vA}, 4, v1
""")
        self.mksrd(SRD_X, P_X, 2560)
        self.mksrd(SRD_OUT, P_OUT, 2560)
        a(f"""
  s_mul_i32 s{sT2}, s{sJ}, 320
  s_lshl_b32 s{sT3}, s{sH}, 5
  s_add_u32 s{sT2}, s{sT2}, s{sT3}
  v_bfe_u32 v{vO}, v1, 2, 1
  v_mul_u32_u24 v{vO}, 1280, v{vO}
  v_and_b32 v{tmp}, 3, v1
  v_lshl_add_u32 v{vO}, v{tmp}, 3, v{vO}
  v_add_u32 v{vO}, s{sT2}, v{vO}
  buffer_load_dwordx2 {vr(vX,2)}, v{vO}, {srd(SRD_X)}, 0 offen
""")
        for r in range(4):
            a(f"  v_mov_b32 v{R+28+r}, v{vTAG}")
        a(f"  s_mov_b32 s{sSAVE}, 0x00ffffff\n  s_mov_b32 s{sSAVE+1}, 0")
        Lp = self.lab("pollF")
        a.label(Lp)
        for k in range(4):
            a(f"  buffer_load_dwordx4 {vr(R+4*k,4)}, v{vA}, {srd(SRD_WS)}, s{sT0} offen offset:{1024*k} sc1")
        for k in range(4, 7):
            a(f"  buffer_load_dwordx4 {vr(R+4*k,4)}, v{vA}, {srd(SRD_WS)}, s{sT1} offen offset:{1024*(k-4)} sc1")
        a(f"  s_mov_b64 exec, s[{sSAVE}:{sSAVE+1}]")
        a(f"  buffer_load_dwordx4 {vr(R+28,4)}, v{vA}, {srd(SRD_WS)}, s{sT1} offen offset:3072 sc1")
        a("  s_mov_b64 exec, -1")
        a("  s_waitcnt vmcnt(0)")
        self.tagcheck([R+i for i in range(32)], tmp, vTAG)
        self.poll_tail(Lp)
        S, F = R, R+16
        for r in range(4):
            a(f"  v_add_f32 v{S+r}, v{S+r}, v{S+4+r}\n  v_add_f32 v{S+8+r}, v{S+8+r}, v{S+12+r}")
            a(f"  v_add_f32 v{F+r}, v{F+r}, v{F+4+r}\n  v_add_f32 v{F+8+r}, v{F+8+r}, v{F+12+r}")
        for r in range(4):
            a(f"  v_add_f32 v{S+r}, v{S+r}, v{S+8+r}\n  v_add_f32 v{F+r}, v{F+r}, v{F+8+r}")
        regs = [S+i for i in range(4)] + [F+i for i in range(4)]
        self.red(regs, "v_add_f32", tmp, ["r8", "p16", "p32"])
        for r in range(4):
            self.rb(F+r, F+r)
            self.silu(F+r, F+r, tmp+r)
            self.rb(F+r, F+r)
            self.rb(S+r, S+r)
            a(f"  v_mul_f32 v{S+r}, v{S+r}, v{F+r}")
            self.rb(S+r, S+r)
        a(f"  v_lshlrev_b32 v{tmp}, 16, v{vX}\n  v_and_b32 v{tmp+1}, 0xffff0000, v{vX}")
        a(f"  v_lshlrev_b32 v{tmp+2}, 16, v{vX+1}\n  v_and_b32 v{tmp+3}, 0xffff0000, v{vX+1}")
        for r in range(4):
            a(f"  v_add_f32 v{S+r}, v{S+r}, v{tmp+r}")
        a(f"  v_cvt_pk_bf16_f32 v{S}, v{S}, v{S+1}\n  v_cvt_pk_bf16_f32 v{S+1}, v{S+2}, v{S+3}")
        a(f"  s_mov_b64 exec, 0xff")
        a(f"  buffer_store_dwordx2 {vr(S,2)}, v{vO}, {srd(SRD_OUT)}, 0 offen sc1")
        Le = self.lab("noep")
        a(f"  s_or_b32 s{sT0}, s{sH}, s{sJ}\n  s_cmp_eq_u32 s{sT0}, 0\n  s_cbranch_scc0 {Le}")
        a(f"  s_mov_b64 exec, 1\n  v_mov_b32 v{tmp}, 0\n  v_mov_b32 v{tmp+1}, s{sTAG32}")
        a(f"  buffer_store_dword v{tmp+1}, v{tmp}, {srd(SRD_WS)}, 0 offen offset:{WS_EP} sc1")
        a.label(Le)
        a("  s_mov_b64 exec, -1")

    def role_a(self):
        a = self.a
        a.label("L_roleA")
        sHG = sH; sBB = sJ
        vL16, vQK, vPV0, vPV1, vQR, vTAG, vT0, vT1 = 4, 5, 6, 7, 8, 9, 10, 11
        vQL, vQW, vMW, vMR, vPW, vPR, vOP, vSTP = 12, 13, 14, 15, 16, 17, 18, 19
        T = 24
        fQ = 64
        fK, fV = 128, 192
        a(f"""
  s_sub_u32 s{sT0}, s2, 128
  s_lshr_b32 s{sHG}, s{sT0}, 6
  s_lshr_b32 s{sBB}, s{sT0}, 5
  s_and_b32 s{sBB}, s{sBB}, 1
  s_and_b32 s{sSP}, s{sT0}, 31
  s_lshr_b32 s{sFS}, s{sT0}, 2
  s_and_b32 s{sJJ}, s{sT0}, 3
  v_lshlrev_b32 v{vL16}, 4, v1
  s_waitcnt lgkmcnt(0)
""")
        self.ts(0)
        self.mksrd(SRD_X, P_X, 2560)
        self.mksrd(SRD_A, P_CKV, 2*4096*1024)
        self.mksrd(SRD_WS, P_WS, WS_SIZE)
        a(f"  s_load_dword s{sTAG32}, s[{P_WS}:{P_WS+1}], {WS_EP}")
        vx = T
        L1 = self.lab("nox")
        a(f"  s_cmp_lt_u32 s{sW}, 2\n  s_cbranch_scc0 {L1}")
        self.ln_load(vx)
        a.label(L1)
        a(f"""
  s_lshl_b32 s{sT0}, s{sBB}, 12
  s_lshl_b32 s{sT1}, s{sSP}, 7
  s_add_u32 s{sT0}, s{sT0}, s{sT1}
  s_lshl_b32 s{sT1}, s{sW}, 2
  s_add_u32 s{sT0}, s{sT0}, s{sT1}
  s_lshl_b32 s{sT0}, s{sT0}, 10
  s_mul_i32 s{sT1}, s{sW}, {4*CKS}
""")
        for q in range(4):
            for r in range(4):
                a(f"  s_mov_b32 m0, s{sT1}")
                adv = (CKS, 1024) if r < 3 else (29*CKS, 29*1024)
                a(f"  s_add_u32 s{sT1}, s{sT1}, {adv[0]}")
                a(f"  buffer_load_dwordx4 v{vL16}, {srd(SRD_A)}, s{sT0} offen {self.nt_ckv} lds")
                if not (q == 3 and r == 3): a(f"  s_add_u32 s{sT0}, s{sT0}, {adv[1]}")
        a(f"""
  s_waitcnt lgkmcnt(0)
  s_add_u32 s{sTAG32}, s{sTAG32}, 1
  s_and_b32 s{sTAG8}, s{sTAG32}, 0xff
  v_mov_b32 v{vTAG}, s{sTAG8}
""")
        a(f"""
  s_mul_i32 s{sT0}, s{sW}, {16*CKS}
  v_mul_u32_u24 v{vQR}, {CKS}, v2
  v_lshl_add_u32 v{vQR}, v3, 4, v{vQR}
  v_add_u32 v{vQK}, s{sT0}, v{vQR}
  v_add_u32 v{vQR}, {A_Q}, v{vQR}
""")
        a(f"""
  v_lshrrev_b32 v{vT0}, 2, v2
  v_lshl_add_u32 v{vT0}, v3, 2, v{vT0}
  v_mul_u32_u24 v{vPV0}, {CKS}, v{vT0}
  v_and_b32 v{vT0}, 3, v2
  v_lshl_add_u32 v{vPV0}, v{vT0}, 3, v{vPV0}
  s_lshl_b32 s{sT0}, s{sW}, 7
  v_add_u32 v{vPV0}, s{sT0}, v{vPV0}
  v_add_u32 v{vPV1}, {64*CKS}, v{vPV0}
""")
        a(f"""
  s_lshl_b32 s{sT0}, s{sBB}, 5
  s_lshl_b32 s{sT1}, s{sHG}, 4
  s_add_u32 s{sT0}, s{sT0}, s{sT1}
  s_lshl_b32 s{sT1}, s{sW}, 1
  s_add_u32 s{sT0}, s{sT0}, s{sT1}
  s_lshl_b32 s{sT0}, s{sT0}, 10
  s_add_u32 s{sT0}, s{sT0}, {WS_QA}
  v_add_u32 v{vQL}, s{sT0}, v{vL16}
  s_mul_i32 s{sT0}, s{sW}, {2*CKS}
  s_add_u32 s{sT0}, s{sT0}, {A_Q}
  v_add_u32 v{vQW}, s{sT0}, v{vL16}
""")
        a(f"""
  v_lshlrev_b32 v{vMR}, 5, v2
  v_add_u32 v{vMR}, {A_M}, v{vMR}
  s_lshl_b32 s{sT0}, s{sW}, 2
  v_add_u32 v{vMW}, s{sT0}, v{vMR}
  s_lshr_b32 s{sT0}, s{sW}, 1
  s_lshl_b32 s{sT0}, s{sT0}, 10
  s_and_b32 s{sT1}, s{sW}, 1
  s_lshl_b32 s{sT1}, s{sT1}, 3
  s_add_u32 s{sT0}, s{sT0}, s{sT1}
  v_add_u32 v{vPR}, {A_P}, v{vL16}
  v_add_u32 v{vPW}, s{sT0}, v{vPR}
""")
        a(f"""
  s_lshl_b32 s{sT0}, s{sHG}, 6
  s_lshr_b32 s{sT1}, s{sW}, 1
  s_add_u32 s{sT0}, s{sT0}, s{sT1}
  s_mul_i32 s{sT0}, s{sT0}, {OIN_STRIDE}
  s_lshl_b32 s{sT1}, s{sBB}, 5
  s_add_u32 s{sT1}, s{sT1}, s{sSP}
  s_lshl_b32 s{sT2}, s{sT1}, 8
  s_add_u32 s{sT0}, s{sT0}, s{sT2}
  s_and_b32 s{sT2}, s{sW}, 1
  s_lshl_b32 s{sT2}, s{sT2}, 7
  s_add_u32 s{sT0}, s{sT0}, s{sT2}
  s_add_u32 s{sT0}, s{sT0}, {WS_OIN}
  s_mov_b32 s{sT2}, {4*OIN_STRIDE}
  v_mul_lo_u32 v{vOP}, s{sT2}, v2
  v_and_b32 v{vT0}, 1, v3
  v_lshl_add_u32 v{vOP}, v{vT0}, 5, v{vOP}
  v_lshrrev_b32 v{vT0}, 1, v3
  v_lshl_add_u32 v{vOP}, v{vT0}, 4, v{vOP}
  v_add_u32 v{vOP}, s{sT0}, v{vOP}
""")
        a(f"""
  s_lshl_b32 s{sT0}, s{sHG}, 6
  s_mul_i32 s{sT0}, s{sT0}, {OIN_STRIDE}
  s_lshl_b32 s{sT1}, s{sT1}, 3
  s_add_u32 s{sT0}, s{sT0}, s{sT1}
  s_add_u32 s{sT0}, s{sT0}, {WS_OIN + 16384}
  v_lshl_add_u32 v{vT0}, v2, 2, v3
  s_mov_b32 s{sT2}, {OIN_STRIDE}
  v_mul_lo_u32 v{vSTP}, s{sT2}, v{vT0}
  v_add_u32 v{vSTP}, s{sT0}, v{vSTP}
""")
        L5 = self.lab("noln")
        a(f"  s_cmp_lt_u32 s{sW}, 2\n  s_cbranch_scc0 {L5}")
        a("  s_waitcnt vmcnt(16)")
        self.ln_compute(vx, T + 8, A_XN)
        a.label(L5)
        for q in range(4):
            a(f"  s_waitcnt vmcnt({12-4*q}) lgkmcnt(0)\n  s_barrier")
            if q == 0: self.ts(1)
            base = vPV0 if q < 2 else vPV1
            qq = q & 1
            for ct in range(4):
                for u in range(2):
                    r = fV + (ct*4 + q)*4 + 2*u
                    a(f"  ds_read_b64_tr_b16 {vr(r,2)}, v{base} offset:{(32*qq+16*u)*CKS + 32*ct}")
            Lq = self.lab("noqk")
            a(f"  s_lshr_b32 s{sT0}, s{sW}, 1\n  s_cmp_eq_u32 s{sT0}, {q}\n  s_cbranch_scc0 {Lq}")
            for t in range(16):
                a(f"  ds_read_b128 {vr(fK+4*t,4)}, v{vQK} offset:{64*t}")
            a.label(Lq)
        self.ts(2)
        Lp = self.lab("pollCF")
        a(f"  s_lshl_b32 s{sT0}, s{sHG}, 8\n  s_add_u32 s{sT0}, s{sT0}, {WS_CF}\n  v_lshlrev_b32 v{vT0}, 2, v1")
        a.label(Lp)
        a(f"  buffer_load_dword v{T}, v{vT0}, {srd(SRD_WS)}, s{sT0} offen sc1")
        a("  s_waitcnt vmcnt(0)")
        a(f"  v_cmp_ne_u32 vcc, s{sTAG32}, v{T}")
        self.poll_tail(Lp)
        self.ts(3)
        Lp = self.lab("pollQ")
        a.label(Lp)
        a(f"  buffer_load_dwordx4 {vr(T,4)}, v{vQL}, {srd(SRD_WS)}, 0 offen sc1")
        a(f"  buffer_load_dwordx4 {vr(T+4,4)}, v{vQL}, {srd(SRD_WS)}, 0 offen offset:1024 sc1")
        a("  s_waitcnt vmcnt(0)")
        self.markcheck([T+i for i in range(8)], T+8)
        self.poll_tail(Lp)
        a(f"  ds_write_b128 v{vQW}, {vr(T,4)}\n  ds_write_b128 v{vQW}, {vr(T+4,4)} offset:{CKS}")
        a("  s_waitcnt lgkmcnt(0)\n  s_barrier")
        self.ts(4)
        S = T
        for t in range(16):
            a(f"  ds_read_b128 {vr(fQ+4*t,4)}, v{vQR} offset:{64*t}")
        for t in range(16):
            a(f"  s_waitcnt lgkmcnt({min(15-t, 15)})")
            c = "0" if t == 0 else vr(S, 4)
            a(f"  v_mfma_f32_16x16x32_bf16 {vr(S,4)}, {vr(fK+4*t,4)}, {vr(fQ+4*t,4)}, {c}")
        mx, tmp = T+4, T+5
        a(f"  v_max3_f32 v{mx}, v{S}, v{S+1}, v{S+2}\n  v_max_f32 v{mx}, v{mx}, v{S+3}")
        self.red([mx], "v_max_f32", tmp, ["p16", "p32"])
        a(f"  ds_write_b32 v{vMW}, v{mx}")
        a("  s_waitcnt lgkmcnt(0)\n  s_barrier")
        m8 = T + 8
        a(f"  ds_read_b128 {vr(m8,4)}, v{vMR}\n  ds_read_b128 {vr(m8+4,4)}, v{vMR} offset:16")
        a("  s_waitcnt lgkmcnt(0)")
        a(f"  v_max3_f32 v{mx}, v{m8}, v{m8+1}, v{m8+2}\n  v_max3_f32 v{mx}, v{mx}, v{m8+3}, v{m8+4}")
        a(f"  v_max3_f32 v{mx}, v{mx}, v{m8+5}, v{m8+6}\n  v_max_f32 v{mx}, v{mx}, v{m8+7}")
        for r in range(4):
            a(f"  v_sub_f32 v{S+r}, v{S+r}, v{mx}")
        for r in range(4):
            a(f"  v_exp_f32 v{S+r}, v{S+r}")
        pk = T + 6
        a(f"  v_cvt_pk_bf16_f32 v{pk}, v{S}, v{S+1}\n  v_cvt_pk_bf16_f32 v{pk+1}, v{S+2}, v{S+3}")
        a(f"  ds_write_b64 v{vPW}, {vr(pk,2)}")
        ls = T + 16
        a(f"  v_lshlrev_b32 v{S}, 16, v{pk}\n  v_and_b32 v{S+1}, 0xffff0000, v{pk}")
        a(f"  v_lshlrev_b32 v{S+2}, 16, v{pk+1}\n  v_and_b32 v{S+3}, 0xffff0000, v{pk+1}")
        a(f"  v_add_f32 v{ls}, v{S}, v{S+1}\n  v_add_f32 v{S+2}, v{S+2}, v{S+3}\n  v_add_f32 v{ls}, v{ls}, v{S+2}")
        self.red([ls], "v_add_f32", tmp, ["p16", "p32"])
        a(f"  ds_write_b32 v{vMW}, v{ls} offset:{A_L - A_M}")
        a("  s_waitcnt lgkmcnt(0)\n  s_barrier")
        self.ts(5)
        pf = fQ
        for s in range(4):
            a(f"  ds_read_b128 {vr(pf+4*s,4)}, v{vPR} offset:{1024*s}")
        l8 = T + 8
        a(f"  ds_read_b128 {vr(l8,4)}, v{vMR} offset:{A_L - A_M}\n  ds_read_b128 {vr(l8+4,4)}, v{vMR} offset:{A_L - A_M + 16}")
        acc = fQ + 16
        for s in range(4):
            a(f"  s_waitcnt lgkmcnt({5-s})")
            for ct in range(4):
                c = "0" if s == 0 else vr(acc+4*ct, 4)
                a(f"  v_mfma_f32_16x16x32_bf16 {vr(acc+4*ct,4)}, {vr(fV+(ct*4+s)*4,4)}, {vr(pf+4*s,4)}, {c}")
        Ls = self.lab("nostats")
        a("  s_waitcnt lgkmcnt(0)")
        a(f"  s_cmp_eq_u32 s{sW}, 0\n  s_cbranch_scc0 {Ls}")
        a(f"  v_add_f32 v{l8}, v{l8}, v{l8+1}\n  v_add_f32 v{l8+2}, v{l8+2}, v{l8+3}\n  v_add_f32 v{l8+4}, v{l8+4}, v{l8+5}\n  v_add_f32 v{l8+6}, v{l8+6}, v{l8+7}")
        a(f"  v_add_f32 v{l8}, v{l8}, v{l8+2}\n  v_add_f32 v{l8+4}, v{l8+4}, v{l8+6}\n  v_add_f32 v{l8+1}, v{l8}, v{l8+4}")
        a(f"  v_mov_b32 v{l8}, v{mx}")
        a(f"  buffer_store_dwordx2 {vr(l8,2)}, v{vSTP}, {srd(SRD_WS)}, 0 offen sc1")
        a.label(Ls)
        pkd = T + 16
        for pp in range(2):
            for u in range(2):
                ac = acc + 4*(2*pp+u)
                a(f"  v_cvt_pk_bf16_f32 v{pkd+4*pp+2*u}, v{ac}, v{ac+1}\n  v_cvt_pk_bf16_f32 v{pkd+4*pp+2*u+1}, v{ac+2}, v{ac+3}")
        for pp in range(2):
            b0 = pkd + 4*pp
            a(f"  v_permlane16_swap_b32 v{b0}, v{b0+2}\n  v_permlane16_swap_b32 v{b0+1}, v{b0+3}")
        for pp in range(2):
            a(f"  buffer_store_dwordx4 {vr(pkd+4*pp,4)}, v{vOP}, {srd(SRD_WS)}, 0 offen offset:{64*pp} sc1")
        self.ts(6)
        if self.stop == "attn":
            self.ts_flush(); a("  s_endpgm"); return
        Lend = self.lab("noffn")
        a(f"  s_cmp_lt_u32 s{sFS}, 27\n  s_cbranch_scc0 {Lend}")
        self.mksrd(SRD_B, P_W1, 640*3456)
        self.mksrd(SRD_C, P_W2, 1728*1280)
        a("  s_barrier")
        vW1 = T
        a(f"""
  v_lshrrev_b32 v{vT0}, 3, v1
  v_bfe_u32 v{vT1}, v{vT0}, 1, 1
  s_and_b32 s{sT0}, s{sW}, 1
  s_lshl_b32 s{sT0}, s{sT0}, 1
  v_or_b32 v{vT1}, s{sT0}, v{vT1}
  v_lshlrev_b32 v{vT1}, 1, v{vT1}
  v_and_b32 v{vW1}, 7, v1
  v_xor_b32 v{vW1}, v{vW1}, v{vT1}
  v_lshlrev_b32 v{vW1}, 4, v{vW1}
  v_mul_u32_u24 v{vT0}, 3456, v{vT0}
  v_add_u32 v{vW1}, v{vW1}, v{vT0}
  s_mul_i32 s{sT0}, s{sJJ}, {160*3456}
  s_lshl_b32 s{sT1}, s{sFS}, 7
  s_add_u32 s{sT0}, s{sT0}, s{sT1}
  s_mul_i32 s{sT1}, s{sW}, {8*3456}
  s_add_u32 s{sT0}, s{sT0}, s{sT1}
  s_lshl_b32 s{sT1}, s{sW}, 10
  s_add_u32 s{sT1}, s{sT1}, {A_W1}
""")
        Lw = self.lab("w1done")
        for k in range(3):
            if k == 2:
                a(f"  s_cmp_lt_u32 s{sW}, 4\n  s_cbranch_scc0 {Lw}")
            a(f"  s_mov_b32 m0, s{sT1}")
            a(f"  s_add_u32 s{sT1}, s{sT1}, 8192")
            a(f"  buffer_load_dwordx4 v{vW1}, {srd(SRD_B)}, s{sT0} offen {self.nt_w} lds")
            if k < 2: a(f"  s_add_u32 s{sT0}, s{sT0}, {64*3456}")
        a(f"""
  s_lshl_b32 s{sT0}, s{sFS}, 6
  s_lshl_b32 s{sT1}, s{sW}, 4
  s_add_u32 s{sT0}, s{sT0}, s{sT1}
  s_mul_i32 s{sT0}, s{sT0}, 1280
  s_mul_i32 s{sT1}, s{sJJ}, 320
  s_add_u32 s{sT0}, s{sT0}, s{sT1}
  s_mul_i32 s{sT1}, s{sW}, 5120
  s_add_u32 s{sT1}, s{sT1}, {A_W2}
""")
        self.dma_rows320(SRD_C, sT0, sT1, T+1, T+2, T+3, self.nt_w)
        a.label(Lw)
        vX1, vTR1, vP1, vH, vHR, vTR2, vF2 = T+4, T+5, T+6, T+7, T+8, T+9, T+10
        a(f"""
  s_mul_i32 s{sT0}, s{sJJ}, 320
  s_add_u32 s{sT0}, s{sT0}, {A_XN}
  v_and_b32 v{vT0}, 1, v2
  v_mul_u32_u24 v{vX1}, 1280, v{vT0}
  v_lshl_add_u32 v{vX1}, v3, 4, v{vX1}
  v_add_u32 v{vX1}, s{sT0}, v{vX1}
  v_lshrrev_b32 v{vT0}, 2, v2
  v_lshl_add_u32 v{vT1}, v3, 3, v{vT0}
  v_lshlrev_b32 v{vTR1}, 7, v{vT1}
  v_lshrrev_b32 v{vT0}, 1, v{vT0}
  v_and_b32 v{vT1}, 1, v3
  v_lshl_or_b32 v{vT0}, v{vT1}, 1, v{vT0}
  v_lshlrev_b32 v{vT0}, 1, v{vT0}
  v_bfe_u32 v{vT1}, v2, 1, 1
  s_and_b32 s{sT0}, s{sW}, 3
  s_lshl_b32 s{sT0}, s{sT0}, 1
  v_or_b32 v{vT1}, s{sT0}, v{vT1}
  v_xor_b32 v{vT1}, v{vT1}, v{vT0}
  v_lshl_add_u32 v{vTR1}, v{vT1}, 4, v{vTR1}
  v_and_b32 v{vT0}, 1, v2
  v_lshl_add_u32 v{vTR1}, v{vT0}, 3, v{vTR1}
""")
        a(f"""
  s_lshl_b32 s{sT0}, s{sFS}, 2
  s_add_u32 s{sT0}, s{sT0}, s{sJJ}
  s_lshl_b32 s{sT0}, s{sT0}, 9
  s_lshl_b32 s{sT1}, s{sW}, 6
  s_add_u32 s{sT0}, s{sT0}, s{sT1}
  s_add_u32 s{sT0}, s{sT0}, {WS_E5}
  v_and_b32 v{vT0}, 1, v2
  v_lshlrev_b32 v{vP1}, 8, v{vT0}
  v_lshl_add_u32 v{vP1}, v3, 4, v{vP1}
  v_add_u32 v{vP1}, s{sT0}, v{vP1}
  v_mul_u32_u24 v{vHR}, 160, v{vT0}
  v_lshl_add_u32 v{vHR}, v3, 4, v{vHR}
  v_add_u32 v{vHR}, {A_H}, v{vHR}
  v_mul_u32_u24 v{vH}, 160, v3
  v_lshl_add_u32 v{vH}, v2, 3, v{vH}
  v_add_u32 v{vH}, {A_H}, v{vH}
""")
        a(f"""
  v_lshrrev_b32 v{vT0}, 2, v2
  v_lshl_add_u32 v{vT0}, v3, 3, v{vT0}
  v_mul_u32_u24 v{vTR2}, 320, v{vT0}
  v_and_b32 v{vT0}, 3, v2
  v_lshl_add_u32 v{vTR2}, v{vT0}, 3, v{vTR2}
  s_lshl_b32 s{sT0}, s{sW}, 5
  s_add_u32 s{sT0}, s{sT0}, {A_W2}
  v_add_u32 v{vTR2}, s{sT0}, v{vTR2}
  s_mul_i32 s{sT0}, s{sJJ}, 10
  s_add_u32 s{sT0}, s{sT0}, s{sW}
  s_lshl_b32 s{sT0}, s{sT0}, 6
  s_add_u32 s{sT0}, s{sT0}, s{sFS}
  s_add_u32 s{sT0}, s{sT0}, 32
  s_lshl_b32 s{sT0}, s{sT0}, 7
  s_add_u32 s{sT0}, s{sT0}, {WS_FIN}
  v_and_b32 v{vT0}, 1, v2
  v_lshlrev_b32 v{vF2}, 6, v{vT0}
  v_lshl_add_u32 v{vF2}, v3, 4, v{vF2}
  v_add_u32 v{vF2}, s{sT0}, v{vF2}
""")
        a("  s_waitcnt vmcnt(0)\n  s_barrier")
        self.ts(7)
        F = fQ
        L1f = self.lab("noffn1")
        a(f"  s_cmp_lt_u32 s{sW}, 4\n  s_cbranch_scc0 {L1f}")
        xf, af, ac = F, F+20, F+40
        for s in range(5):
            a(f"  ds_read_b128 {vr(xf+4*s,4)}, v{vX1} offset:{64*s}")
            a(f"  ds_read_b64_tr_b16 {vr(af+4*s,2)}, v{vTR1} offset:{A_W1 + 32*s*128}")
            a(f"  ds_read_b64_tr_b16 {vr(af+4*s+2,2)}, v{vTR1} offset:{A_W1 + (32*s+4)*128}")
        for s in range(5):
            a(f"  s_waitcnt lgkmcnt({12-3*s})")
            c = "0" if s == 0 else vr(ac, 4)
            a(f"  v_mfma_f32_16x16x32_bf16 {vr(ac,4)}, {vr(af+4*s,4)}, {vr(xf+4*s,4)}, {c}")
        self.tagpack([ac+i for i in range(4)], vTAG)
        a(f"  s_mov_b64 exec, s[{sM2}:{sM2+1}]")
        a(f"  buffer_store_dwordx4 {vr(ac,4)}, v{vP1}, {srd(SRD_WS)}, 0 offen sc1")
        a("  s_mov_b64 exec, -1")
        a.label(L1f)
        f2a, f2b = F+48, F+56
        for s in range(2):
            a(f"  ds_read_b64_tr_b16 {vr(f2a+4*s,2)}, v{vTR2} offset:{32*s*320}")
            a(f"  ds_read_b64_tr_b16 {vr(f2a+4*s+2,2)}, v{vTR2} offset:{(32*s+4)*320}")
        for s in range(2):
            a(f"  ds_read_b64_tr_b16 {vr(f2b+4*s,2)}, v{vTR2} offset:{32*s*320+256}")
            a(f"  ds_read_b64_tr_b16 {vr(f2b+4*s+2,2)}, v{vTR2} offset:{(32*s+4)*320+256}")
        Lh = self.lab("noh")
        a(f"  s_cmp_eq_u32 s{sW}, 4\n  s_cbranch_scc0 {Lh}")
        a(f"  s_lshl_b32 s{sT0}, s{sFS}, 11\n  s_add_u32 s{sT0}, s{sT0}, {WS_E5}")
        a(f"  s_mov_b64 exec, s[{sM32}:{sM32+1}]")
        Lp = self.lab("pollH")
        a.label(Lp)
        for k in range(4):
            a(f"  buffer_load_dwordx4 {vr(F+4*k,4)}, v{vL16}, {srd(SRD_WS)}, s{sT0} offen offset:{512*k} sc1")
        a("  s_waitcnt vmcnt(0)")
        self.tagcheck([F+i for i in range(16)], F+16, vTAG)
        self.poll_tail(Lp)
        for r in range(4):
            a(f"  v_add_f32 v{F+r}, v{F+r}, v{F+4+r}\n  v_add_f32 v{F+8+r}, v{F+8+r}, v{F+12+r}\n  v_add_f32 v{F+r}, v{F+r}, v{F+8+r}")
            self.rb(F+r, F+r)
            self.silu(F+r, F+r, F+16)
        a(f"  v_cvt_pk_bf16_f32 v{F}, v{F}, v{F+1}\n  v_cvt_pk_bf16_f32 v{F+1}, v{F+2}, v{F+3}")
        a(f"  ds_write_b64 v{vH}, {vr(F,2)}")
        a("  s_mov_b64 exec, -1")
        a.label(Lh)
        a("  s_waitcnt lgkmcnt(0)\n  s_barrier")
        hf, ac, acb = F, F+8, F+12
        for t in range(2):
            a(f"  ds_read_b128 {vr(hf+4*t,4)}, v{vHR} offset:{64*t}")
        for t in range(2):
            a(f"  s_waitcnt lgkmcnt({1-t})")
            c = "0" if t == 0 else vr(ac, 4)
            a(f"  v_mfma_f32_16x16x32_bf16 {vr(ac,4)}, {vr(f2a+4*t,4)}, {vr(hf+4*t,4)}, {c}")
            c = "0" if t == 0 else vr(acb, 4)
            a(f"  v_mfma_f32_16x16x32_bf16 {vr(acb,4)}, {vr(f2b+4*t,4)}, {vr(hf+4*t,4)}, {c}")
        self.tagpack([ac+i for i in range(4)], vTAG)
        self.tagpack([acb+i for i in range(4)], vTAG)
        a(f"  s_mov_b64 exec, s[{sM2}:{sM2+1}]")
        a(f"  buffer_store_dwordx4 {vr(ac,4)}, v{vF2}, {srd(SRD_WS)}, 0 offen sc1")
        L2t = self.lab("no2t")
        a(f"  s_cmp_lt_u32 s{sW}, 2\n  s_cbranch_scc0 {L2t}")
        a(f"  s_mov_b32 s{sT0}, {8*64*128}")
        a(f"  buffer_store_dwordx4 {vr(acb,4)}, v{vF2}, {srd(SRD_WS)}, s{sT0} offen sc1")
        a.label(L2t)
        a("  s_mov_b64 exec, -1")
        self.ts(8)
        a.label(Lend)
        self.ts_flush(0)
        a("  s_endpgm")

    def build(self):
        self.prologue()
        self.role_w()
        self.role_a()
        self.a.label("L_end")
        self.a("  s_endpgm")
        body, n = hazard_pass(self.a.text())
        hdr = open("cdna_kernels/" + NAME + ".s.ref").read().split("\n")
        head = []
        for ln in hdr:
            if ln.startswith("; @launch"):
                head.append(f"; @launch grid=(256,1,1) block=(512,1,1) lds={LDS_BYTES}")
                break
            if ln.startswith("; Override") or ln.startswith("; grid="):
                continue
            head.append(ln)
        txt = "\n".join(head) + "\n"
        txt += f""".amdgcn_target "amdgcn-amd-amdhsa--gfx950"
.text
.globl {NAME}_kernel
.p2align 8
.type {NAME}_kernel,@function
{NAME}_kernel:
{body}
.section .rodata,"a"
.p2align 6
.amdhsa_kernel {NAME}_kernel
  .amdhsa_next_free_vgpr 256
  .amdhsa_next_free_sgpr 102
  .amdhsa_accum_offset 256
  .amdhsa_group_segment_fixed_size 0
  .amdhsa_kernarg_size 96
  .amdhsa_user_sgpr_count 2
  .amdhsa_user_sgpr_kernarg_segment_ptr 1
  .amdhsa_system_sgpr_workgroup_id_x 1
.end_amdhsa_kernel
"""
        return txt

if __name__ == "__main__":
    import argparse
    ap = argparse.ArgumentParser()
    ap.add_argument("-o", default="cdna_kernels/" + NAME + ".s")
    ap.add_argument("--ts", action="store_true")
    ap.add_argument("--stop", default=None)
    ap.add_argument("--spin", type=int, default=None)
    ap.add_argument("--tsdbg", action="store_true")
    ap.add_argument("--ntw", default="nt")
    ap.add_argument("--ntc", default="nt")
    args = ap.parse_args()
    g = Gen(ts=args.ts, spin=args.spin, ts_dbg=args.tsdbg, stop=args.stop, nt_w=args.ntw, nt_ckv=args.ntc)
    t = g.build()
    open(args.o, "w").write(t)
    print("wrote", args.o, len(t), "bytes")
```

```python
import re

class Asm:
    def __init__(self):
        self.lines = []
    def __call__(self, text):
        for ln in text.strip("\n").split("\n"):
            ln = ln.rstrip()
            if ln.strip():
                self.lines.append(ln)
    def label(self, name):
        self.lines.append(name + ":")
    def text(self):
        return "\n".join(self.lines) + "\n"

_reg_re = re.compile(r"^(-|\|)?(abs\()?([vsa])(\d+)\)?\|?$")
_rng_re = re.compile(r"^(-)?([vsa])\[(\d+):(\d+)\]$")

def regs_of(op):
    op = op.strip()
    m = _rng_re.match(op)
    if m:
        return {f"{m.group(2)}{i}" for i in range(int(m.group(3)), int(m.group(4)) + 1)}
    m = _reg_re.match(op)
    if m:
        return {f"{m.group(3)}{m.group(4)}"}
    if op in ("vcc", "vcc_lo", "vcc_hi"):
        return {"vcc"}
    if op in ("exec", "exec_lo", "exec_hi"):
        return {"exec"}
    if op == "m0":
        return {"m0"}
    return set()

TRANS = ("v_exp_f32", "v_log_f32", "v_rcp_f32", "v_rsq_f32", "v_sqrt_f32", "v_sin_f32", "v_cos_f32")

class Ins:
    __slots__ = ("text", "mn", "cls", "dst", "src", "dpp", "srcC", "passes", "lds_dma", "wide_store", "nops", "ab")
    def __init__(self, text):
        self.text = text
        t = text.split(";")[0].strip()
        parts = t.split(None, 1)
        self.mn = parts[0]
        rest = parts[1] if len(parts) > 1 else ""
        ops = [o.strip() for o in rest.split(",")] if rest else []
        mods = ""
        if ops:
            sp = ops[-1].split()
            ops[-1] = sp[0] if sp else ""
            mods = " ".join(sp[1:])
        mn = self.mn
        self.dst, self.src = set(), set()
        self.dpp = ("row_" in t) or ("quad_perm" in t) or ("wave_" in t)
        self.srcC = set(); self.ab = set(); self.passes = 0
        self.lds_dma = False; self.wide_store = False; self.nops = 1
        R = [regs_of(o) for o in ops]
        allsrc = lambda lst: set().union(*lst) if lst else set()
        if mn == "s_nop":
            self.cls = "nop"; self.nops = int(ops[0], 0) + 1
        elif mn.startswith("v_mfma"):
            self.cls = "mfma"; self.dst = R[0]; self.ab = R[1] | R[2]; self.srcC = R[3]; self.src = self.ab | self.srcC
            self.passes = 8 if "32x32" in mn else 4
        elif mn.startswith("v_"):
            self.cls = "valu"
            base = mn
            if mn.startswith("v_cmp"):
                self.dst = R[0]; self.src = allsrc(R[1:])
            elif mn.startswith("v_permlane") and "swap" in mn:
                self.dst = R[0] | R[1]; self.src = R[0] | R[1]
            elif mn.startswith(("v_add_co", "v_sub_co", "v_addc_co", "v_subb_co")):
                self.dst = R[0] | R[1]; self.src = allsrc(R[2:])
            else:
                self.dst = R[0]; self.src = allsrc(R[1:])
                if mn.startswith(("v_fmac", "v_dot2c", "v_pk_fmac", "v_writelane")) or self.dpp:
                    self.src |= R[0]
                if mn.startswith("v_cndmask") and len(ops) == 3:
                    self.src |= {"vcc"}
        elif mn.startswith("ds_"):
            self.cls = "ds"
            if mn.startswith(("ds_read", "ds_bpermute", "ds_permute", "ds_swizzle")):
                self.dst = R[0]; self.src = allsrc(R[1:])
            else:
                self.src = allsrc(R)
        elif mn.startswith(("buffer_", "global_")):
            self.cls = "vmem"
            words = mods.split()
            if mn.startswith("buffer_load") and "lds" in words:
                self.lds_dma = True; self.src = allsrc(R) | {"m0"}
            elif mn.startswith(("buffer_load", "global_load")):
                self.dst = R[0]; self.src = allsrc(R[1:])
            else:
                self.src = allsrc(R)
                if "x4" in mn or "x3" in mn:
                    self.wide_store = True
                    self.ab = R[0] if mn.startswith("buffer_store") else R[1]
        elif mn.startswith("s_"):
            self.cls = "salu"
            if mn.startswith(("s_cmp", "s_cbranch", "s_branch", "s_waitcnt", "s_barrier", "s_endpgm", "s_bitcmp", "s_setprio", "s_sleep")):
                self.src = allsrc(R)
            else:
                self.dst = R[0] if R else set(); self.src = allsrc(R[1:])
                if "saveexec" in mn:
                    self.dst |= {"exec"}; self.src |= {"exec"}
        else:
            self.cls = "other"

def isv(r): return r[0] in "va" and r not in ("vcc",)
def iss(r): return (r[0] == "s") or r in ("vcc", "exec", "m0")

def required(p, c):
    n = 0
    pv = {r for r in p.dst if isv(r)}
    ps = {r for r in p.dst if iss(r)}
    if p.cls == "valu":
        if c.cls == "mfma" and pv & c.src: n = max(n, 2)
        if c.cls == "valu":
            if c.dpp and pv & c.src: n = max(n, 2)
            if c.mn.startswith("v_permlane") and pv & c.src: n = max(n, 2)
            if c.mn.startswith(("v_readlane", "v_readfirstlane")) and pv & c.src: n = max(n, 1)
            if p.mn.startswith(TRANS) and pv & c.src: n = max(n, 1)
            sread = {r for r in c.src if iss(r)}
            if ps & sread:
                n = max(n, 4 if c.mn.startswith(("v_readlane", "v_writelane")) else 2)
            if "exec" in ps: n = max(n, 5 if c.dpp else 2)
        if c.cls == "mfma" and "exec" in ps: n = max(n, 4)
        if c.cls in ("vmem",) and ps & c.src: n = max(n, 5)
        if c.cls == "ds" and ps & c.src: n = max(n, 5)
    if p.cls == "mfma":
        w = {4: 8, 8: 12}[p.passes]
        if c.cls == "mfma":
            if pv & c.ab: n = max(n, w)
            if pv & c.srcC and not (c.srcC == p.dst and c.passes == p.passes): n = max(n, {4: 6, 8: 10}[p.passes])
            if pv & c.dst and not (c.srcC == p.dst and c.dst == p.dst) : n = max(n, w)
        elif c.cls in ("valu", "vmem", "ds"):
            if pv & (c.src | c.dst): n = max(n, w)
        if c.cls in ("valu",) and (p.srcC & c.dst): n = max(n, {4: 3, 8: 7}[p.passes])
        if c.cls in ("vmem", "ds") and (p.srcC & c.dst): n = max(n, {4: 3, 8: 7}[p.passes])
    if p.cls == "salu" and "m0" in p.dst and c.cls == "vmem" and c.lds_dma: n = max(n, 1)
    if p.wide_store and c.cls in ("valu", "mfma") and (p.ab & c.dst): n = max(n, 2)
    if p.wide_store and c.cls in ("vmem", "ds") and (p.ab & c.dst): n = max(n, 1)
    return n

def hazard_pass(text, verbose=False):
    out = []
    hists = [[]]
    pending = {}
    inserted = 0
    def need_for(hist, c):
        need = 0; dist = 0
        for p in reversed(hist):
            r = required(p, c)
            if r > dist:
                need = max(need, r - dist)
            dist += p.nops
            if dist > 24:
                break
        return need
    for ln in text.split("\n"):
        s = ln.split(";")[0].strip()
        if not s or s.startswith("."):
            out.append(ln)
            continue
        if s.endswith(":"):
            lab = s[:-1]
            hists = hists + pending.pop(lab, [])
            out.append(ln)
            continue
        c = Ins(ln.strip())
        need = max([need_for(h, c) for h in hists] + [0])
        if need:
            out.append(f"  s_nop {need-1}")
            nop = Ins(f"s_nop {need-1}")
            for h in hists: h.append(nop)
            inserted += 1
            if verbose: print("nop", need, "before", ln.strip())
        out.append(ln)
        for h in hists: h.append(c)
        hists = [h[-30:] for h in hists]
        uniq = []
        for h in hists:
            key = tuple(id(x) for x in h[-24:])
            if key not in [k for k, _ in uniq]: uniq.append((key, h))
        hists = [h for _, h in uniq]
        if c.mn.startswith(("s_cbranch", "s_branch")):
            tgt = s.split()[1]
            pending.setdefault(tgt, []).extend([list(h) for h in hists])
            if c.mn == "s_branch":
                hists = [[]]
        if c.mn == "s_endpgm":
            hists = [[]]
    return "\n".join(out), inserted
```

```python
import sys, struct
sys.path.insert(0, "gen")
from asmlib import Asm, hazard_pass

NAME = "recurrent_scan__compressed_kv_cla__dense_activation_silu__decode"

def f32(x):
    return "0x%08x" % struct.unpack("<I", struct.pack("<f", x))[0]

WS_EP   = 0x0
WS_CF   = 0x1000
WS_E0   = 0x2000
WS_QA   = 0x30000
WS_E3   = 0x40000
WS_FIN  = 0x60000
WS_E5   = 0xB0000
WS_ST   = 0xC0000
WS_OIN  = 0x100000
OIN_STRIDE = 16384
WS_TS   = 0x400000
WS_SIZE = 0x10000000

W_WQ, W_XN, W_XS, W_CL, W_WGT, W_QS, W_IL = 0, 40960, 43520, 45824, 46400, 46656, 47168
W_WUV, W_WO, W_OST = 49152, 81920, 122880
A_CKV, A_Q, A_P, A_M, A_L, A_XN, A_H = 0, 135168, 152064, 156160, 156672, 157184, 159744
A_W1, A_W2 = 0, 20480
CKS = 1056
LDS_BYTES = 163840

P_X, P_CKV, P_WQ, P_WUK, P_WUV, P_WO, P_BX, P_W1, P_W2, P_OUT, P_DBG, P_WS = 4, 6, 8, 10, 12, 14, 16, 18, 20, 22, 24, 26
SRD_X, SRD_A, SRD_B, SRD_C, SRD_D, SRD_WS, SRD_OUT = 28, 32, 36, 40, 44, 48, 52
sW, sH, sJ, sSP, sTAG32, sTAG8, sCNT = 56, 57, 58, 59, 60, 61, 62
sT0, sT1, sT2, sT3, sT4 = 63, 64, 65, 66, 67
sFS, sJJ = 68, 69
sM2, sM32 = 70, 72
sSAVE = 74
sOK = 76
sMASKHI = 77
sOIN = 78
sT5 = 79
sTS = 80
POLL_LIMIT = 400000

def srd(n): return f"s[{n}:{n+3}]"
def vr(a, n): return f"v[{a}:{a+n-1}]" if n > 1 else f"v{a}"

class Gen:
    def __init__(self, ts=False, nt_w="nt", nt_ckv="nt", ts_dbg=False, spin=None, adelay=False):
        self.a = Asm()
        self.ts_on = ts; self.ts_dbg = ts_dbg; self.spin = spin
        self.nt_w = nt_w; self.nt_ckv = nt_ckv
        self.adelay = adelay
        self.uid = 0

    def lab(self, p):
        self.uid += 1
        return f"L_{p}_{self.uid}"

    def ts(self, k):
        if self.ts_on:
            self.a(f"  s_memrealtime s[96:97]\n  s_waitcnt lgkmcnt(0)\n  s_mov_b32 s{sTS+k}, s96")

    def ts_flush(self, wave=0):
        if not self.ts_on: return
        a = self.a
        L = self.lab("tsskip")
        a(f"  s_cmp_eq_u32 s{sW}, {wave}\n  s_cbranch_scc0 {L}")
        a(f"  s_lshl_b32 s{sT0}, s2, 6\n  s_add_u32 s{sT0}, s{sT0}, {WS_TS}")
        a("  s_mov_b64 exec, 1\n  v_mov_b32 v1, 0")
        for k in range(16):
            a(f"  v_mov_b32 v2, s{sTS+k}\n  buffer_store_dword v2, v1, {srd(SRD_WS)}, s{sT0} offen offset:{4*k}")
        if self.ts_dbg:
            L2 = self.lab("tsdbg")
            a(f"  s_and_b32 s{sT0}, s2, 127\n  s_cmp_eq_u32 s{sT0}, 0\n  s_cbranch_scc0 {L2}")
            self.mksrd(SRD_OUT, P_DBG, 256)
            a(f"  s_lshr_b32 s{sT0}, s2, 7\n  s_mul_i32 s{sT0}, s{sT0}, 64")
            for k in range(16):
                a(f"  v_mov_b32 v2, s{sTS+k}\n  buffer_store_dword v2, v1, {srd(SRD_OUT)}, s{sT0} offen offset:{4*k}")
            a.label(L2)
        a("  s_waitcnt vmcnt(0)")
        a.label(L)

    def mksrd(self, s, ptr, nbytes):
        self.a(f"  s_mov_b32 s{s}, s{ptr}\n  s_mov_b32 s{s+1}, s{ptr+1}\n  s_mov_b32 s{s+2}, {nbytes}\n  s_mov_b32 s{s+3}, 0x00020000")

    def poll_tail(self, loop):
        d = self.lab("pd")
        self.a(f"  s_add_u32 s{sCNT}, s{sCNT}, 1\n  s_cbranch_vccz {d}\n  s_cmp_lt_u32 s{sCNT}, {POLL_LIMIT}\n  s_cbranch_scc1 {loop}")
        self.a.label(d)

    def tagcheck(self, regs, tmp, vtag):
        a = self.a
        t1 = ((0xF0 ^ 0xAA) | (0xCC ^ 0xAA)) & 0xff
        t2 = (0xF0 | (0xCC ^ 0xAA)) & 0xff
        a(f"  v_bitop3_b32 v{tmp}, v{regs[0]}, v{regs[1]}, v{vtag} bitop3:{t1:#x}")
        for r in regs[2:]:
            a(f"  v_bitop3_b32 v{tmp}, v{tmp}, v{r}, v{vtag} bitop3:{t2:#x}")
        a(f"  v_and_b32 v{tmp}, 0xff, v{tmp}\n  v_cmp_ne_u32 vcc, 0, v{tmp}")

    def markcheck(self, regs, tmp):
        a = self.a
        a(f"  v_max3_u32 v{tmp}, v{regs[0]}, v{regs[1]}, v{regs[2]}")
        rest = regs[3:]
        while len(rest) >= 2:
            a(f"  v_max3_u32 v{tmp}, v{tmp}, v{rest[0]}, v{rest[1]}")
            rest = rest[2:]
        if rest:
            a(f"  v_max_u32 v{tmp}, v{tmp}, v{rest[0]}")
        a(f"  v_cmp_eq_u32 vcc, -1, v{tmp}")

    def tagpack(self, regs, vtag):
        for r in regs:
            self.a(f"  v_and_or_b32 v{r}, v{r}, s{sMASKHI}, v{vtag}")

    def red(self, regs, op, tmp, steps):
        a = self.a
        for s in steps:
            if s[0] == "r":
                for r in regs:
                    a(f"  {op}_dpp v{r}, v{r}, v{r} row_ror:{s[1:]} row_mask:0xf bank_mask:0xf")
            else:
                for i, r in enumerate(regs):
                    a(f"  v_mov_b32 v{tmp+i}, v{r}")
                for i, r in enumerate(regs):
                    a(f"  v_permlane{s[1:]}_swap_b32 v{r}, v{tmp+i}")
                for i, r in enumerate(regs):
                    a(f"  {op} v{r}, v{r}, v{tmp+i}")

    def rb(self, dst, src):
        self.a(f"  v_cvt_pk_bf16_f32 v{dst}, v{src}, v{src}\n  v_and_b32 v{dst}, 0xffff0000, v{dst}")

    def ln_load(self, vx):
        a = self.a
        a(f"  s_mul_i32 s{sT0}, s{sW}, 1280\n  v_mul_u32_u24 v{vx+5}, 20, v1\n  v_add_u32 v{vx+5}, s{sT0}, v{vx+5}")
        a(f"  buffer_load_dwordx4 {vr(vx,4)}, v{vx+5}, {srd(SRD_X)}, 0 offen\n  buffer_load_dword v{vx+4}, v{vx+5}, {srd(SRD_X)}, 0 offen offset:16")

    def ln_compute(self, vx, e, xn_base):
        a = self.a
        for k in range(5):
            a(f"  v_lshlrev_b32 v{e+2*k}, 16, v{vx+k}\n  v_and_b32 v{e+2*k+1}, 0xffff0000, v{vx+k}")
        s, t, m, mb = e+10, e+11, e+12, e+13
        a(f"  v_add_f32 v{s}, v{e}, v{e+1}")
        for k in range(2, 10):
            a(f"  v_add_f32 v{s}, v{s}, v{e+k}")
        self.red([s], "v_add_f32", t, ["r1", "r2", "r4", "r8", "p16", "p32"])
        a(f"  v_mul_f32 v{m}, {f32(1/640)}, v{s}")
        a(f"  v_mov_b32 v{s}, 0")
        for k in range(10):
            a(f"  v_sub_f32 v{t}, v{e+k}, v{m}\n  v_fmac_f32 v{s}, v{t}, v{t}")
        self.red([s], "v_add_f32", t, ["r1", "r2", "r4", "r8", "p16", "p32"])
        a(f"  v_mul_f32 v{s}, {f32(1/640)}, v{s}")
        self.rb(s, s)
        a(f"  v_add_f32 v{s}, {f32(1e-5)}, v{s}")
        self.rb(s, s)
        a(f"  v_sqrt_f32 v{s}, v{s}")
        self.rb(s, s)
        a(f"  v_rcp_f32 v{s}, v{s}")
        self.rb(mb, m)
        for k in range(5):
            x0, x1 = e+2*k, e+2*k+1
            a(f"  v_sub_f32 v{x0}, v{x0}, v{mb}\n  v_sub_f32 v{x1}, v{x1}, v{mb}")
            a(f"  v_cvt_pk_bf16_f32 v{t}, v{x0}, v{x1}")
            a(f"  v_lshlrev_b32 v{x0}, 16, v{t}\n  v_and_b32 v{x1}, 0xffff0000, v{t}")
            a(f"  v_mul_f32 v{x0}, v{x0}, v{s}\n  v_mul_f32 v{x1}, v{x1}, v{s}")
            a(f"  v_cvt_pk_bf16_f32 v{vx+k}, v{x0}, v{x1}")
        a(f"  v_add_u32 v{t}, {xn_base}, v{vx+5}")
        for k in range(5):
            a(f"  ds_write_b32 v{t}, v{vx+k} offset:{4*k}")

    def rows320_addr(self, vdst, vq, vr_):
        a = self.a
        for k in range(5):
            a(f"  v_add_u32 v{vq}, {64*k}, v1")
            a(f"  v_mul_u32_u24 v{vr_}, 3277, v{vq}\n  v_lshrrev_b32 v{vr_}, 16, v{vr_}")
            a(f"  v_mul_u32_u24 v{vdst+k}, 20, v{vr_}\n  v_sub_u32 v{vq}, v{vq}, v{vdst+k}")
            a(f"  v_mul_u32_u24 v{vdst+k}, 1280, v{vr_}\n  v_lshl_add_u32 v{vdst+k}, v{vq}, 4, v{vdst+k}")

    def dma(self, vaddr, S, sOFF, sLDS, nt, dl, dg):
        a = self.a
        a(f"  s_mov_b32 m0, s{sLDS}")
        if dl: a(f"  s_add_u32 s{sLDS}, s{sLDS}, {dl}")
        else: a("  s_nop 0")
        a(f"  buffer_load_dwordx4 v{vaddr}, {srd(S)}, s{sOFF} offen {nt} lds")
        if dg: a(f"  s_add_u32 s{sOFF}, s{sOFF}, {dg}")

    def publish_line(self, acc, vPUB, vTAG, sBase):
        a = self.a
        self.tagpack([acc+i for i in range(4)], vTAG)
        a(f"  s_mov_b64 exec, s[{sM2}:{sM2+1}]")
        a(f"  buffer_store_dwordx4 {vr(acc,4)}, v{vPUB}, {srd(SRD_WS)}, {sBase} offen sc1")
        a("  s_mov_b64 exec, -1")

    def consume_part(self, vPOLL, vXSW, vTAG, sBase, T):
        a = self.a
        Lp = self.lab("pollp")
        a(f"  s_mov_b64 exec, s[{sM32}:{sM32+1}]")
        a.label(Lp)
        a(f"  buffer_load_dwordx4 {vr(T,4)}, v{vPOLL}, {srd(SRD_WS)}, s{sBase} offen sc1")
        a("  s_waitcnt vmcnt(0)")
        self.tagcheck([T, T+1, T+2, T+3], T+4, vTAG)
        self.poll_tail(Lp)
        a(f"  v_cvt_pk_bf16_f32 v{T}, v{T}, v{T+1}\n  v_cvt_pk_bf16_f32 v{T+1}, v{T+2}, v{T+3}")
        a(f"  ds_write_b64 v{vXSW}, {vr(T,2)}")
        a("  s_mov_b64 exec, -1")
        a("  s_waitcnt lgkmcnt(0)\n  s_barrier")

    def silu(self, dst, src, tmp):
        a = self.a
        a(f"  v_mul_f32 v{tmp}, {f32(-1.4426950408889634)}, v{src}\n  v_exp_f32 v{tmp}, v{tmp}")
        a(f"  v_add_f32 v{tmp}, 1.0, v{tmp}\n  v_rcp_f32 v{tmp}, v{tmp}")
        a(f"  v_mul_f32 v{dst}, v{src}, v{tmp}")

    def prologue(self):
        a = self.a
        a(f"""
  s_cmp_ge_u32 s2, 256
  s_cbranch_scc1 L_end
  s_load_dwordx16 s[4:19], s[0:1], 0
  s_load_dwordx8 s[20:27], s[0:1], 64
  v_lshrrev_b32 v4, 6, v0
  v_and_b32 v1, 63, v0
  v_readfirstlane_b32 s{sW}, v4
  v_and_b32 v2, 15, v0
  v_lshrrev_b32 v3, 4, v1
  s_mov_b32 s{sCNT}, 0
  s_mov_b32 s{sM2}, 0x00030003
  s_mov_b32 s{sM2+1}, 0x00030003
  s_mov_b32 s{sM32}, -1
  s_mov_b32 s{sM32+1}, 0
  s_mov_b32 s{sMASKHI}, 0xffffff00
""")
        a("  s_cmp_lt_u32 s2, 128\n  s_cbranch_scc0 L_roleA")

    def role_w(self):
        a = self.a
        vDMA4, vUK, vTR, vXF, vPUB, vPOLL, vXSW, vXSR, vQSW, vTAG, vT0, vT1 = 4, 5, 6, 7, 8, 9, 10, 11, 12, 13, 14, 15
        fUK, fUV, fO0, fO1 = 16, 32, 48, 64
        T = 80
        vQAP = T + 52
        a(f"""
  s_and_b32 s{sH}, s2, 7
  s_lshr_b32 s{sT0}, s2, 5
  s_lshl_b32 s{sT0}, s{sT0}, 3
  s_or_b32 s{sH}, s{sH}, s{sT0}
  s_lshr_b32 s{sJ}, s2, 3
  s_and_b32 s{sJ}, s{sJ}, 3
""")
        a(f"""
  s_lshr_b32 s{sT0}, s{sW}, 1
  s_and_b32 s{sT0}, s{sT0}, 1
  s_lshl_b32 s{sT0}, s{sT0}, 2
  v_or_b32 v{vT0}, s{sT0}, v3
  v_lshlrev_b32 v{vT0}, 1, v{vT0}
  v_xor_b32 v{vT0}, v{vT0}, v2
  v_lshlrev_b32 v{vT0}, 4, v{vT0}
  v_lshl_add_u32 v{vDMA4}, v3, 13, v{vT0}
""")
        a(f"""
  s_lshl_b32 s{sT0}, s{sH}, 10
  s_lshl_b32 s{sT1}, s{sJ}, 8
  s_add_u32 s{sT0}, s{sT0}, s{sT1}
  s_add_u32 s{sT0}, s{sT0}, {WS_QA}
  v_lshlrev_b32 v{vQAP}, 15, v3
  v_lshl_add_u32 v{vQAP}, v2, 4, v{vQAP}
  v_add_u32 v{vQAP}, s{sT0}, v{vQAP}
  s_mul_i32 s{sT0}, s{sJ}, {160*8192}
  s_lshl_b32 s{sT1}, s{sH}, 8
  s_add_u32 s{sT0}, s{sT0}, s{sT1}
  s_lshl_b32 s{sT1}, s{sW}, 15
  s_add_u32 s{sT0}, s{sT0}, s{sT1}
  s_lshl_b32 s{sT1}, s{sW}, 10
  s_waitcnt lgkmcnt(0)
""")
        self.ts(0)
        self.mksrd(SRD_X, P_X, 2560)
        self.mksrd(SRD_A, P_WQ, 640*8192)
        self.mksrd(SRD_WS, P_WS, WS_SIZE)
        a(f"  s_load_dword s{sTAG32}, s[{P_WS}:{P_WS+1}], {WS_EP}")
        vx = T
        L1 = self.lab("nox")
        a(f"  s_cmp_lt_u32 s{sW}, 2\n  s_cbranch_scc0 {L1}")
        a(f"  s_mov_b32 s{sT2}, s{sT0}")
        self.ln_load(vx)
        a(f"  s_mov_b32 s{sT0}, s{sT2}")
        a.label(L1)
        vM1 = T + 8
        a(f"  v_mov_b32 v{vM1}, -1\n  v_mov_b32 v{vM1+1}, -1\n  v_mov_b32 v{vM1+2}, -1\n  v_mov_b32 v{vM1+3}, -1")
        L2 = self.lab("noclean")
        a(f"  s_cmp_eq_u32 s{sW}, 7\n  s_cbranch_scc0 {L2}")
        a(f"  s_mov_b64 exec, s[{sM32}:{sM32+1}]")
        a(f"  buffer_store_dwordx4 {vr(vM1,4)}, v{vQAP}, {srd(SRD_WS)}, 0 offen sc1")
        a("  s_mov_b64 exec, -1")
        a.label(L2)
        for k in range(5):
            self.dma(vDMA4, SRD_A, sT0, sT1, self.nt_w, 8192, 32*8192 if k < 4 else 0)
        self.mksrd(SRD_B, P_WUK, 512*8192)
        a(f"""
  s_lshl_b32 s{sT0}, s{sJ}, 7
  s_lshl_b32 s{sT1}, s{sW}, 4
  s_add_u32 s{sT0}, s{sT0}, s{sT1}
  s_lshl_b32 s{sT0}, s{sT0}, 13
  s_lshl_b32 s{sT1}, s{sH}, 8
  s_add_u32 s{sT0}, s{sT0}, s{sT1}
  v_lshlrev_b32 v{vUK}, 13, v2
  v_lshl_add_u32 v{vUK}, v3, 4, v{vUK}
""")
        for t in range(4):
            a(f"  buffer_load_dwordx4 {vr(fUK+4*t,4)}, v{vUK}, {srd(SRD_B)}, s{sT0} offen offset:{64*t} {self.nt_w}")
        a(f"""
  s_waitcnt lgkmcnt(0)
  s_add_u32 s{sTAG32}, s{sTAG32}, 1
  s_and_b32 s{sTAG8}, s{sTAG32}, 0xff
  v_mov_b32 v{vTAG}, s{sTAG8}
""")
        L4 = self.lab("nocf")
        a(f"  s_cmp_eq_u32 s{sW}, 7\n  s_cbranch_scc0 {L4}")
        a(f"""
  s_lshl_b32 s{sT0}, s{sH}, 2
  s_add_u32 s{sT0}, s{sT0}, s{sJ}
  s_lshl_b32 s{sT0}, s{sT0}, 2
  s_add_u32 s{sT0}, s{sT0}, {WS_CF}
  v_mov_b32 v{vT0}, 0
  v_mov_b32 v{vT1}, s{sTAG32}
  s_mov_b64 exec, 1
  s_waitcnt vmcnt(9)
  buffer_store_dword v{vT1}, v{vT0}, {srd(SRD_WS)}, s{sT0} offen sc1
  s_mov_b64 exec, -1
""")
        a.label(L4)
        a(f"""
  s_lshl_b32 s{sT0}, s{sH}, 2
  s_add_u32 s{sT0}, s{sT0}, s{sJ}
  s_lshl_b32 s{sOIN}, s{sT0}, 14
  s_add_u32 s{sOIN}, s{sOIN}, {WS_OIN}
  s_lshl_b32 s{sT0}, s{sW}, 11
  s_add_u32 s{sT0}, s{sT0}, s{sOIN}
  v_lshlrev_b32 v{vT0}, 4, v1
  buffer_store_dwordx4 {vr(vM1,4)}, v{vT0}, {srd(SRD_WS)}, s{sT0} offen sc1
  buffer_store_dwordx4 {vr(vM1,4)}, v{vT0}, {srd(SRD_WS)}, s{sT0} offen offset:1024 sc1
""")
        a(f"""
  v_lshrrev_b32 v{vT0}, 2, v2
  v_and_b32 v{vT1}, 1, v3
  v_lshl_or_b32 v{vT1}, v{vT1}, 2, v{vT0}
  v_lshlrev_b32 v{vT1}, 1, v{vT1}
  v_lshl_add_u32 v{vT0}, v3, 3, v{vT0}
  v_lshlrev_b32 v{vTR}, 8, v{vT0}
  v_bfe_u32 v{vT0}, v2, 1, 1
  s_lshl_b32 s{sT0}, s{sW}, 1
  v_or_b32 v{vT0}, s{sT0}, v{vT0}
  v_xor_b32 v{vT0}, v{vT0}, v{vT1}
  v_lshl_add_u32 v{vTR}, v{vT0}, 4, v{vTR}
  v_and_b32 v{vT1}, 1, v2
  v_lshl_add_u32 v{vTR}, v{vT1}, 3, v{vTR}
""")
        a(f"""
  s_mul_i32 s{sT0}, s{sJ}, 320
  s_add_u32 s{sT0}, s{sT0}, {W_XN}
  v_mul_u32_u24 v{vXF}, 1280, v{vT1}
  v_lshl_add_u32 v{vXF}, v3, 4, v{vXF}
  v_add_u32 v{vXF}, s{sT0}, v{vXF}
  s_lshl_b32 s{sT0}, s{sH}, 2
  s_add_u32 s{sT0}, s{sT0}, s{sJ}
  s_lshl_b32 s{sT0}, s{sT0}, 3
  s_add_u32 s{sT0}, s{sT0}, s{sW}
  s_lshl_b32 s{sT0}, s{sT0}, 7
  v_lshlrev_b32 v{vPUB}, 6, v{vT1}
  v_lshl_add_u32 v{vPUB}, v3, 4, v{vPUB}
  v_add_u32 v{vPUB}, s{sT0}, v{vPUB}
  s_lshl_b32 s{sT0}, s{sW}, 5
  s_add_u32 s{sT0}, s{sT0}, {W_QS}
  v_lshlrev_b32 v{vQSW}, 8, v{vT1}
  v_lshl_add_u32 v{vQSW}, v3, 3, v{vQSW}
  v_add_u32 v{vQSW}, s{sT0}, v{vQSW}
""")
        a(f"""
  s_lshl_b32 s{sT0}, s{sH}, 2
  s_lshr_b32 s{sT1}, s{sW}, 1
  s_add_u32 s{sT0}, s{sT0}, s{sT1}
  s_lshl_b32 s{sT0}, s{sT0}, 10
  s_and_b32 s{sT1}, s{sW}, 1
  s_lshl_b32 s{sT1}, s{sT1}, 6
  s_add_u32 s{sT0}, s{sT0}, s{sT1}
  v_lshrrev_b32 v{vT0}, 2, v1
  v_lshlrev_b32 v{vPOLL}, 7, v{vT0}
  v_and_b32 v{vT0}, 3, v1
  v_lshl_add_u32 v{vPOLL}, v{vT0}, 4, v{vPOLL}
  v_add_u32 v{vPOLL}, s{sT0}, v{vPOLL}
  s_mul_i32 s{sT0}, s{sW}, 288
  s_add_u32 s{sT0}, s{sT0}, {W_XS}
  v_lshlrev_b32 v{vXSW}, 3, v1
  v_add_u32 v{vXSW}, s{sT0}, v{vXSW}
  v_and_b32 v{vT0}, 7, v2
  v_mul_u32_u24 v{vXSR}, 288, v{vT0}
  v_lshl_add_u32 v{vXSR}, v3, 4, v{vXSR}
  v_add_u32 v{vXSR}, {W_XS}, v{vXSR}
""")
        L5 = self.lab("noln")
        a(f"  s_cmp_lt_u32 s{sW}, 2\n  s_cbranch_scc0 {L5}")
        a("  s_waitcnt vmcnt(11)")
        self.ln_compute(vx, T + 16, W_XN)
        a.label(L5)
        a("  s_waitcnt vmcnt(6) lgkmcnt(0)\n  s_barrier")
        self.ts(1)
        xf, af, acc = T, T + 20, T + 40
        for s in range(5):
            a(f"  ds_read_b128 {vr(xf+4*s,4)}, v{vXF} offset:{64*s}")
            a(f"  ds_read_b64_tr_b16 {vr(af+4*s,2)}, v{vTR} offset:{W_WQ + 8192*s}")
            a(f"  ds_read_b64_tr_b16 {vr(af+4*s+2,2)}, v{vTR} offset:{W_WQ + 8192*s + 1024}")
        sE0, sE3 = sT2, sT3
        a(f"  s_mov_b32 s{sE0}, {WS_E0}\n  s_mov_b32 s{sE3}, {WS_E3}")
        for s in range(5):
            a(f"  s_waitcnt lgkmcnt({12-3*s})")
            c = "0" if s == 0 else vr(acc, 4)
            a(f"  v_mfma_f32_16x16x32_bf16 {vr(acc,4)}, {vr(af+4*s,4)}, {vr(xf+4*s,4)}, {c}")
        self.publish_line(acc, vPUB, vTAG, f"s{sE0}")
        self.ts(2)
        self.consume_part(vPOLL, vXSW, vTAG, sE0, T)
        self.ts(3)
        xr = T + 8
        for t in range(4):
            a(f"  ds_read_b128 {vr(xr+4*t,4)}, v{vXSR} offset:{64*t}")
        sc = 128**-0.5 * 1.4426950408889634
        a(f"  s_mov_b32 s{sT0}, {f32(sc)}")
        for t in range(4):
            a(f"  s_waitcnt lgkmcnt({3-t})")
            c = "0" if t == 0 else vr(acc, 4)
            a(f"  v_mfma_f32_16x16x32_bf16 {vr(acc,4)}, {vr(fUK+4*t,4)}, {vr(xr+4*t,4)}, {c}")
        self.red([acc, acc+1, acc+2, acc+3], "v_add_f32", T, ["r2", "r4"])
        for r in range(4):
            a(f"  v_mul_f32 v{acc+r}, s{sT0}, v{acc+r}")
        a(f"  v_cvt_pk_bf16_f32 v{acc}, v{acc}, v{acc+1}\n  v_cvt_pk_bf16_f32 v{acc+1}, v{acc+2}, v{acc+3}")
        a(f"  ds_write_b64 v{vQSW}, {vr(acc,2)}")
        a(f"  v_lshlrev_b32 v{T}, 4, v1\n  v_add_u32 v{T}, {W_QS}, v{T}")
        a("  s_waitcnt lgkmcnt(0)\n  s_barrier")
        Lq = self.lab("noqa")
        a(f"  s_cmp_eq_u32 s{sW}, 0\n  s_cbranch_scc0 {Lq}")
        a(f"  s_mov_b64 exec, s[{sM32}:{sM32+1}]")
        a(f"  ds_read_b128 {vr(T+4,4)}, v{T}\n  s_waitcnt lgkmcnt(0)")
        a(f"  buffer_store_dwordx4 {vr(T+4,4)}, v{vQAP}, {srd(SRD_WS)}, 0 offen sc1")
        a("  s_mov_b64 exec, -1")
        a.label(Lq)
        self.ts(4)
        self.mksrd(SRD_C, P_WUV, 512*8192)
        self.mksrd(SRD_D, P_WO, 32*163840)
        a(f"""
  s_lshl_b32 s{sT0}, s{sJ}, 20
  s_lshl_b32 s{sT1}, s{sH}, 8
  s_add_u32 s{sT0}, s{sT0}, s{sT1}
  s_lshl_b32 s{sT1}, s{sW}, 15
  s_add_u32 s{sT0}, s{sT0}, s{sT1}
  s_lshl_b32 s{sT1}, s{sW}, 10
  s_add_u32 s{sT1}, s{sT1}, {W_WUV}
""")
        for k in range(4):
            self.dma(vDMA4, SRD_C, sT0, sT1, self.nt_w, 8192, 32*8192 if k < 3 else 0)
        vR = T + 8
        self.rows320_addr(vR, T, T+1)
        a(f"""
  s_mul_i32 s{sT0}, s{sH}, 163840
  s_mul_i32 s{sT1}, s{sW}, {16*1280}
  s_add_u32 s{sT0}, s{sT0}, s{sT1}
  s_mul_i32 s{sT1}, s{sJ}, 320
  s_add_u32 s{sT0}, s{sT0}, s{sT1}
  s_mul_i32 s{sT1}, s{sW}, 5120
  s_add_u32 s{sT1}, s{sT1}, {W_WO}
""")
        for k in range(5):
            self.dma(vR+k, SRD_D, sT0, sT1, self.nt_w, 1024, 0)
        vTRV, vTRO, vOL, vOW, vSTL, vOTR, vWGW, vWGR, vCLW, vCLR, vFINP, vIL = [T+40+i for i in range(12)]
        assert vIL < vQAP
        a(f"  v_add_u32 v{vTRV}, {W_WUV}, v{vTR}")
        a(f"""
  v_lshrrev_b32 v{vT0}, 2, v2
  v_lshl_add_u32 v{vT1}, v3, 3, v{vT0}
  v_mul_u32_u24 v{vTRO}, 320, v{vT1}
  v_lshl_add_u32 v{vT1}, v3, 2, v{vT0}
  v_mul_u32_u24 v{vOTR}, 288, v{vT1}
  v_and_b32 v{vT0}, 3, v2
  v_lshl_add_u32 v{vTRO}, v{vT0}, 3, v{vTRO}
  v_lshl_add_u32 v{vOTR}, v{vT0}, 3, v{vOTR}
  s_lshl_b32 s{sT0}, s{sW}, 5
  s_add_u32 s{sT1}, s{sT0}, {W_WO}
  v_add_u32 v{vTRO}, s{sT1}, v{vTRO}
  s_add_u32 s{sT1}, s{sT0}, {W_OST}
  v_add_u32 v{vOTR}, s{sT1}, v{vOTR}
""")
        a(f"""
  s_lshl_b32 s{sT0}, s{sW}, 3
  v_add_u32 v{vT0}, s{sT0}, v3
  v_lshlrev_b32 v{vOL}, 8, v{vT0}
  v_lshl_add_u32 v{vOL}, v2, 4, v{vOL}
  v_mul_u32_u24 v{vOW}, 288, v{vT0}
  v_lshl_add_u32 v{vOW}, v2, 4, v{vOW}
  v_add_u32 v{vOW}, {W_OST}, v{vOW}
  s_lshr_b32 s{sT0}, s{sH}, 4
  s_lshl_b32 s{sT0}, s{sT0}, 14
  s_and_b32 s{sT1}, s{sH}, 15
  s_lshl_b32 s{sT1}, s{sT1}, 4
  s_add_u32 s{sT0}, s{sT0}, s{sT1}
  s_add_u32 s{sT0}, s{sT0}, {WS_ST}
  v_lshlrev_b32 v{vSTL}, 8, v1
  v_add_u32 v{vSTL}, s{sT0}, v{vSTL}
""")
        a(f"""
  v_lshrrev_b32 v{vT0}, 5, v1
  v_mul_u32_u24 v{vWGW}, 192, v{vT0}
  v_lshlrev_b32 v{vIL}, 2, v{vT0}
  v_add_u32 v{vIL}, {W_IL}, v{vIL}
  v_bfe_u32 v{vT0}, v1, 2, 2
  v_lshl_add_u32 v{vWGW}, v{vT0}, 4, v{vWGW}
  v_bfe_u32 v{vT0}, v1, 4, 1
  v_lshl_add_u32 v{vWGW}, v{vT0}, 3, v{vWGW}
  v_and_b32 v{vT0}, 3, v1
  v_lshl_add_u32 v{vWGW}, v{vT0}, 1, v{vWGW}
  v_add_u32 v{vWGW}, {W_WGT}, v{vWGW}
  v_and_b32 v{vT0}, 1, v2
  v_lshlrev_b32 v{vWGR}, 7, v{vT0}
  v_lshl_add_u32 v{vWGR}, v3, 4, v{vWGR}
  v_add_u32 v{vWGR}, {W_WGT}, v{vWGR}
  v_mul_u32_u24 v{vCLR}, 288, v{vT0}
  v_add_u32 v{vCLR}, {W_CL}, v{vCLR}
  s_lshl_b32 s{sT0}, s{sW}, 5
  v_lshl_add_u32 v{vCLW}, v3, 3, v{vCLR}
  v_add_u32 v{vCLW}, s{sT0}, v{vCLW}
  v_lshl_add_u32 v{vCLR}, v3, 4, v{vCLR}
  s_mul_i32 s{sT0}, s{sJ}, 10
  s_add_u32 s{sT0}, s{sT0}, s{sW}
  s_lshl_b32 s{sT0}, s{sT0}, 6
  s_add_u32 s{sT0}, s{sT0}, s{sH}
  s_lshl_b32 s{sT0}, s{sT0}, 7
  s_add_u32 s{sT0}, s{sT0}, {WS_FIN}
  v_lshlrev_b32 v{vFINP}, 6, v{vT0}
  v_lshl_add_u32 v{vFINP}, v3, 4, v{vFINP}
  v_add_u32 v{vFINP}, s{sT0}, v{vFINP}
""")
        a("  s_waitcnt vmcnt(0)\n  s_barrier")
        for s in range(4):
            a(f"  ds_read_b64_tr_b16 {vr(fUV+4*s,2)}, v{vTRV} offset:{8192*s}")
            a(f"  ds_read_b64_tr_b16 {vr(fUV+4*s+2,2)}, v{vTRV} offset:{8192*s+1024}")
        for s in range(4):
            a(f"  ds_read_b64_tr_b16 {vr(fO0+4*s,2)}, v{vTRO} offset:{32*s*320}")
            a(f"  ds_read_b64_tr_b16 {vr(fO0+4*s+2,2)}, v{vTRO} offset:{(32*s+4)*320}")
        L6 = self.lab("no2tile")
        a(f"  s_cmp_lt_u32 s{sW}, 2\n  s_cbranch_scc0 {L6}")
        for s in range(4):
            a(f"  ds_read_b64_tr_b16 {vr(fO1+4*s,2)}, v{vTRO} offset:{32*s*320 + 256}")
            a(f"  ds_read_b64_tr_b16 {vr(fO1+4*s+2,2)}, v{vTRO} offset:{(32*s+4)*320 + 256}")
        a.label(L6)
        self.ts(5)
        Lns = self.lab("nostat")
        a(f"  s_cmp_eq_u32 s{sW}, 0\n  s_cbranch_scc0 {Lns}")
        st, mx, wv, tmp = T, T+4, T+5, T+6
        Lp = self.lab("pollS")
        a.label(Lp)
        a(f"  buffer_load_dwordx4 {vr(st,4)}, v{vSTL}, {srd(SRD_WS)}, 0 offen sc1")
        a("  s_waitcnt vmcnt(0)")
        a(f"  v_cmp_ne_u32 vcc, s{sTAG32}, v{st+2}")
        self.poll_tail(Lp)
        a(f"  v_mov_b32 v{mx}, v{st}")
        self.red([mx], "v_max_f32", tmp, ["r1", "r2", "r4", "r8", "p16"])
        a(f"  v_sub_f32 v{wv}, v{st}, v{mx}\n  v_exp_f32 v{wv}, v{wv}")
        a(f"  v_cvt_pk_bf16_f32 v{tmp}, v{wv}, v{wv}")
        a(f"  v_mov_b32 v{tmp+1}, 0")
        a(f"  v_lshrrev_b32 v{tmp+2}, 5, v1\n  v_lshlrev_b32 v{tmp+2}, 8, v{tmp+2}\n  v_sub_u32 v{tmp+2}, 128, v{tmp+2}\n  v_add_u32 v{tmp+2}, v{vWGW}, v{tmp+2}")
        a(f"  ds_write_b16 v{vWGW}, v{tmp}\n  ds_write_b16 v{tmp+2}, v{tmp+1}")
        a(f"  v_and_b32 v{wv}, 0xffff0000, v{tmp}\n  v_mul_f32 v{wv}, v{wv}, v{st+1}")
        self.red([wv], "v_add_f32", tmp, ["r1", "r2", "r4", "r8", "p16"])
        a(f"  v_rcp_f32 v{wv}, v{wv}")
        a(f"  ds_write_b32 v{vIL}, v{wv}")
        a.label(Lns)
        a("  s_waitcnt lgkmcnt(0)\n  s_barrier")
        self.ts(6)
        o0, o1 = T, T+4
        wf, il = T+24, T+12
        a(f"  ds_read_b128 {vr(wf,4)}, v{vWGR}\n  ds_read_b128 {vr(wf+4,4)}, v{vWGR} offset:64")
        a(f"  v_and_b32 v{T+13}, 1, v2\n  v_lshlrev_b32 v{T+13}, 2, v{T+13}\n  ds_read_b32 v{il}, v{T+13} offset:{W_IL}")
        Lp = self.lab("pollO")
        a.label(Lp)
        a(f"  buffer_load_dwordx4 {vr(o0,4)}, v{vOL}, {srd(SRD_WS)}, s{sOIN} offen sc1")
        a(f"  buffer_load_dwordx4 {vr(o1,4)}, v{vOL}, {srd(SRD_WS)}, s{sOIN} offen offset:1024 sc1")
        a("  s_waitcnt vmcnt(0)")
        self.markcheck([o0+i for i in range(8)], T+10)
        self.poll_tail(Lp)
        a(f"  ds_write_b128 v{vOW}, {vr(o0,4)}\n  ds_write_b128 v{vOW}, {vr(o1,4)} offset:{4*288}")
        a("  s_waitcnt lgkmcnt(0)\n  s_barrier")
        self.ts(7)
        ot = T+16
        for s in range(2):
            a(f"  ds_read_b64_tr_b16 {vr(ot+4*s,2)}, v{vOTR} offset:{32*s*288}")
            a(f"  ds_read_b64_tr_b16 {vr(ot+4*s+2,2)}, v{vOTR} offset:{(32*s+16)*288}")
        acc2 = T + 32
        a("  s_waitcnt lgkmcnt(2)")
        a(f"  v_mfma_f32_16x16x32_bf16 {vr(acc2,4)}, {vr(ot,4)}, {vr(wf,4)}, 0")
        a("  s_waitcnt lgkmcnt(0)")
        a(f"  v_mfma_f32_16x16x32_bf16 {vr(acc2,4)}, {vr(ot+4,4)}, {vr(wf+4,4)}, {vr(acc2,4)}")
        for r in range(4):
            a(f"  v_mul_f32 v{acc2+r}, v{acc2+r}, v{il}")
        a(f"  v_cvt_pk_bf16_f32 v{acc2}, v{acc2}, v{acc2+1}\n  v_cvt_pk_bf16_f32 v{acc2+1}, v{acc2+2}, v{acc2+3}")
        a(f"  ds_write_b64 v{vCLW}, {vr(acc2,2)}")
        a("  s_waitcnt lgkmcnt(0)\n  s_barrier")
        cf = T + 16
        for t in range(4):
            a(f"  ds_read_b128 {vr(cf+4*t,4)}, v{vCLR} offset:{64*t}")
        for t in range(4):
            a(f"  s_waitcnt lgkmcnt({3-t})")
            c = "0" if t == 0 else vr(acc2, 4)
            a(f"  v_mfma_f32_16x16x32_bf16 {vr(acc2,4)}, {vr(fUV+4*t,4)}, {vr(cf+4*t,4)}, {c}")
        self.publish_line(acc2, vPUB, vTAG, f"s{sE3}")
        self.ts(8)
        self.consume_part(vPOLL, vXSW, vTAG, sE3, T)
        self.ts(9)
        xr = T + 8
        for t in range(4):
            a(f"  ds_read_b128 {vr(xr+4*t,4)}, v{vXSR} offset:{64*t}")
        accB = T + 36
        for t in range(4):
            a(f"  s_waitcnt lgkmcnt({3-t})")
            c = "0" if t == 0 else vr(acc2, 4)
            a(f"  v_mfma_f32_16x16x32_bf16 {vr(acc2,4)}, {vr(fO0+4*t,4)}, {vr(xr+4*t,4)}, {c}")
        L7 = self.lab("no2b")
        a(f"  s_cmp_lt_u32 s{sW}, 2\n  s_cbranch_scc0 {L7}")
        for t in range(4):
            c = "0" if t == 0 else vr(accB, 4)
            a(f"  v_mfma_f32_16x16x32_bf16 {vr(accB,4)}, {vr(fO1+4*t,4)}, {vr(xr+4*t,4)}, {c}")
        self.red([acc2+i for i in range(4)], "v_add_f32", T, ["r2", "r4"])
        self.publish_line(acc2, vFINP, vTAG, "0")
        self.red([accB+i for i in range(4)], "v_add_f32", T, ["r2", "r4"])
        a(f"  s_mov_b32 s{sT0}, {8*64*128}")
        self.publish_line(accB, vFINP, vTAG, f"s{sT0}")
        L8 = self.lab("p4done")
        a(f"  s_branch {L8}")
        a.label(L7)
        self.red([acc2+i for i in range(4)], "v_add_f32", T, ["r2", "r4"])
        self.publish_line(acc2, vFINP, vTAG, "0")
        a.label(L8)
        self.ts(10)
        Lf = self.lab("nofinal")
        a(f"  s_cmp_lt_u32 s{sH}, 10\n  s_cbranch_scc0 {Lf}")
        a(f"  s_cmp_eq_u32 s{sW}, 7\n  s_cbranch_scc0 {Lf}")
        self.final(T, vTAG)
        a.label(Lf)
        self.ts(11)
        if self.spin is not None:
            Ls, Le = self.lab("spin"), self.lab("spinend")
            a(f"  s_cmp_eq_u32 s2, 0\n  s_cbranch_scc0 {Le}\n  s_cmp_eq_u32 s{sW}, 7\n  s_cbranch_scc0 {Le}")
            a(f"  s_sub_u32 s{sT0}, s{sTS+self.spin}, s{sTS}")
            a.label(Ls)
            a(f"  s_memrealtime s[{sSAVE}:{sSAVE+1}]\n  s_waitcnt lgkmcnt(0)\n  s_sub_u32 s{sT1}, s{sSAVE}, s{sTS+11}\n  s_cmp_lt_u32 s{sT1}, s{sT0}\n  s_cbranch_scc1 {Ls}")
            a.label(Le)
        self.ts_flush(7)
        a("  s_endpgm")

    def final(self, T, vTAG):
        a = self.a
        R = T
        vA, vX, vO, tmp = T+32, T+34, T+36, T+40
        a(f"""
  s_mul_i32 s{sT0}, s{sJ}, 10
  s_add_u32 s{sT0}, s{sT0}, s{sH}
  s_lshl_b32 s{sT0}, s{sT0}, 13
  s_add_u32 s{sT0}, s{sT0}, {WS_FIN}
  s_add_u32 s{sT1}, s{sT0}, 4096
  v_lshlrev_b32 v{vA}, 4, v1
""")
        self.mksrd(SRD_OUT, P_OUT, 2560)
        a(f"""
  s_mul_i32 s{sT2}, s{sJ}, 320
  s_lshl_b32 s{sT3}, s{sH}, 5
  s_add_u32 s{sT2}, s{sT2}, s{sT3}
  v_bfe_u32 v{vO}, v1, 2, 1
  v_mul_u32_u24 v{vO}, 1280, v{vO}
  v_and_b32 v{tmp}, 3, v1
  v_lshl_add_u32 v{vO}, v{tmp}, 3, v{vO}
  v_add_u32 v{vO}, s{sT2}, v{vO}
  buffer_load_dwordx2 {vr(vX,2)}, v{vO}, {srd(SRD_X)}, 0 offen
""")
        for r in range(4):
            a(f"  v_mov_b32 v{R+28+r}, v{vTAG}")
        a(f"  s_mov_b32 s{sSAVE}, 0x00ffffff\n  s_mov_b32 s{sSAVE+1}, 0")
        Lp = self.lab("pollF")
        a.label(Lp)
        for k in range(4):
            a(f"  buffer_load_dwordx4 {vr(R+4*k,4)}, v{vA}, {srd(SRD_WS)}, s{sT0} offen offset:{1024*k} sc1")
        for k in range(4, 7):
            a(f"  buffer_load_dwordx4 {vr(R+4*k,4)}, v{vA}, {srd(SRD_WS)}, s{sT1} offen offset:{1024*(k-4)} sc1")
        a(f"  s_mov_b64 exec, s[{sSAVE}:{sSAVE+1}]")
        a(f"  buffer_load_dwordx4 {vr(R+28,4)}, v{vA}, {srd(SRD_WS)}, s{sT1} offen offset:3072 sc1")
        a("  s_mov_b64 exec, -1")
        a("  s_waitcnt vmcnt(0)")
        self.tagcheck([R+i for i in range(32)], tmp, vTAG)
        self.poll_tail(Lp)
        S, F = R, R+16
        for r in range(4):
            a(f"  v_add_f32 v{S+r}, v{S+r}, v{S+4+r}\n  v_add_f32 v{S+8+r}, v{S+8+r}, v{S+12+r}")
            a(f"  v_add_f32 v{F+r}, v{F+r}, v{F+4+r}\n  v_add_f32 v{F+8+r}, v{F+8+r}, v{F+12+r}")
        for r in range(4):
            a(f"  v_add_f32 v{S+r}, v{S+r}, v{S+8+r}\n  v_add_f32 v{F+r}, v{F+r}, v{F+8+r}")
        regs = [S+i for i in range(4)] + [F+i for i in range(4)]
        self.red(regs, "v_add_f32", tmp, ["r8", "p16", "p32"])
        for r in range(4): self.rb(F+r, F+r)
        for r in range(4): a(f"  v_mul_f32 v{tmp+r}, {f32(-1.4426950408889634)}, v{F+r}")
        for r in range(4): a(f"  v_exp_f32 v{tmp+r}, v{tmp+r}")
        for r in range(4): self.rb(S+r, S+r)
        for r in range(4): a(f"  v_add_f32 v{tmp+r}, 1.0, v{tmp+r}")
        for r in range(4): a(f"  v_rcp_f32 v{tmp+r}, v{tmp+r}")
        a(f"  v_lshlrev_b32 v{tmp+4}, 16, v{vX}\n  v_and_b32 v{tmp+5}, 0xffff0000, v{vX}")
        a(f"  v_lshlrev_b32 v{tmp+6}, 16, v{vX+1}\n  v_and_b32 v{tmp+7}, 0xffff0000, v{vX+1}")
        for r in range(4): a(f"  v_mul_f32 v{F+r}, v{F+r}, v{tmp+r}")
        for r in range(4): self.rb(F+r, F+r)
        for r in range(4): a(f"  v_mul_f32 v{S+r}, v{S+r}, v{F+r}")
        for r in range(4): self.rb(S+r, S+r)
        for r in range(4): a(f"  v_add_f32 v{S+r}, v{S+r}, v{tmp+4+r}")
        a(f"  v_cvt_pk_bf16_f32 v{S}, v{S}, v{S+1}\n  v_cvt_pk_bf16_f32 v{S+1}, v{S+2}, v{S+3}")
        a(f"  s_mov_b64 exec, 0xff")
        a(f"  buffer_store_dwordx2 {vr(S,2)}, v{vO}, {srd(SRD_OUT)}, 0 offen sc1")
        Le = self.lab("noep")
        a(f"  s_or_b32 s{sT0}, s{sH}, s{sJ}\n  s_cmp_eq_u32 s{sT0}, 0\n  s_cbranch_scc0 {Le}")
        a(f"  s_mov_b64 exec, 1\n  v_mov_b32 v{tmp}, 0\n  v_mov_b32 v{tmp+1}, s{sTAG32}")
        a(f"  buffer_store_dword v{tmp+1}, v{tmp}, {srd(SRD_WS)}, 0 offen offset:{WS_EP} sc1")
        a.label(Le)
        a("  s_mov_b64 exec, -1")

    def role_a(self):
        a = self.a
        a.label("L_roleA")
        sHG = sH; sBB = sJ
        vL16, vQK, vPV0, vPV1, vQR, vTAG, vT0, vT1 = 4, 5, 6, 7, 8, 9, 10, 11
        vQL, vQW, vMW, vMR, vPW, vPR, vOP, vSTP, vCF = 12, 13, 14, 15, 16, 17, 18, 19, 20
        T = 24
        vW1, vR, vX1, vTR1, vP1, vH, vHR, vTR2, vF2, vE5 = 48, 49, 54, 55, 56, 57, 58, 59, 60, 61
        fQ = 64
        fK, fV = 128, 192
        a(f"""
  s_sub_u32 s{sT0}, s2, 128
  s_lshr_b32 s{sHG}, s{sT0}, 6
  s_lshr_b32 s{sBB}, s{sT0}, 5
  s_and_b32 s{sBB}, s{sBB}, 1
  s_and_b32 s{sSP}, s{sT0}, 31
  s_lshr_b32 s{sFS}, s{sT0}, 2
  s_and_b32 s{sJJ}, s{sT0}, 3
  v_lshlrev_b32 v{vL16}, 4, v1
  s_lshl_b32 s{sT0}, s{sBB}, 12
  s_lshl_b32 s{sT1}, s{sSP}, 7
  s_add_u32 s{sT0}, s{sT0}, s{sT1}
  s_lshl_b32 s{sT1}, s{sW}, 2
  s_add_u32 s{sT0}, s{sT0}, s{sT1}
  s_lshl_b32 s{sT3}, s{sT0}, 10
  s_mul_i32 s{sT4}, s{sW}, {4*CKS}
  s_lshl_b32 s{sT5}, s{sHG}, 8
  s_add_u32 s{sT5}, s{sT5}, {WS_CF}
  v_lshlrev_b32 v{vCF}, 2, v1
  v_add_u32 v{vCF}, s{sT5}, v{vCF}
  s_waitcnt lgkmcnt(0)
""")
        self.ts(0)
        self.mksrd(SRD_X, P_X, 2560)
        self.mksrd(SRD_A, P_CKV, 2*4096*1024)
        self.mksrd(SRD_WS, P_WS, WS_SIZE)
        a(f"  s_load_dword s{sTAG32}, s[{P_WS}:{P_WS+1}], {WS_EP}")
        vx = T
        L1 = self.lab("nox")
        a(f"  s_cmp_lt_u32 s{sW}, 2\n  s_cbranch_scc0 {L1}")
        self.ln_load(vx)
        a.label(L1)
        if self.adelay:
            a("  s_waitcnt lgkmcnt(0)")
        vcf = T + 6
        for q in range(4):
            for r in range(4):
                last = (q == 3 and r == 3)
                adv = (CKS, 1024) if r < 3 else (29*CKS, 29*1024)
                self.dma(vL16, SRD_A, sT3, sT4, self.nt_ckv, adv[0] if not last else 0, adv[1] if not last else 0)
            if q == 1:
                a(f"  buffer_load_dword v{vcf}, v{vCF}, {srd(SRD_WS)}, 0 offen sc1")
        a(f"""
  s_waitcnt lgkmcnt(0)
  s_add_u32 s{sTAG32}, s{sTAG32}, 1
  s_and_b32 s{sTAG8}, s{sTAG32}, 0xff
  v_mov_b32 v{vTAG}, s{sTAG8}
""")
        a(f"""
  s_mul_i32 s{sT0}, s{sW}, {16*CKS}
  v_mul_u32_u24 v{vQR}, {CKS}, v2
  v_lshl_add_u32 v{vQR}, v3, 4, v{vQR}
  v_add_u32 v{vQK}, s{sT0}, v{vQR}
  v_add_u32 v{vQR}, {A_Q}, v{vQR}
  v_lshrrev_b32 v{vT0}, 2, v2
  v_lshl_add_u32 v{vT0}, v3, 2, v{vT0}
  v_mul_u32_u24 v{vPV0}, {CKS}, v{vT0}
  v_and_b32 v{vT0}, 3, v2
  v_lshl_add_u32 v{vPV0}, v{vT0}, 3, v{vPV0}
  s_lshl_b32 s{sT0}, s{sW}, 7
  v_add_u32 v{vPV0}, s{sT0}, v{vPV0}
  v_add_u32 v{vPV1}, {64*CKS}, v{vPV0}
""")
        a(f"""
  s_lshl_b32 s{sT0}, s{sBB}, 5
  s_lshl_b32 s{sT1}, s{sHG}, 4
  s_add_u32 s{sT0}, s{sT0}, s{sT1}
  s_lshl_b32 s{sT1}, s{sW}, 1
  s_add_u32 s{sT0}, s{sT0}, s{sT1}
  s_lshl_b32 s{sT0}, s{sT0}, 10
  s_add_u32 s{sT0}, s{sT0}, {WS_QA}
  v_add_u32 v{vQL}, s{sT0}, v{vL16}
  s_mul_i32 s{sT0}, s{sW}, {2*CKS}
  s_add_u32 s{sT0}, s{sT0}, {A_Q}
  v_add_u32 v{vQW}, s{sT0}, v{vL16}
  v_lshlrev_b32 v{vMR}, 5, v2
  v_add_u32 v{vMR}, {A_M}, v{vMR}
  s_lshl_b32 s{sT0}, s{sW}, 2
  v_add_u32 v{vMW}, s{sT0}, v{vMR}
  s_lshr_b32 s{sT0}, s{sW}, 1
  s_lshl_b32 s{sT0}, s{sT0}, 10
  s_and_b32 s{sT1}, s{sW}, 1
  s_lshl_b32 s{sT1}, s{sT1}, 3
  s_add_u32 s{sT0}, s{sT0}, s{sT1}
  v_add_u32 v{vPR}, {A_P}, v{vL16}
  v_add_u32 v{vPW}, s{sT0}, v{vPR}
""")
        a(f"""
  s_lshl_b32 s{sT0}, s{sHG}, 6
  s_lshr_b32 s{sT1}, s{sW}, 1
  s_add_u32 s{sT0}, s{sT0}, s{sT1}
  s_lshl_b32 s{sT0}, s{sT0}, 14
  s_lshl_b32 s{sT1}, s{sBB}, 5
  s_add_u32 s{sT1}, s{sT1}, s{sSP}
  s_lshl_b32 s{sT2}, s{sT1}, 8
  s_add_u32 s{sT0}, s{sT0}, s{sT2}
  s_and_b32 s{sT1}, s{sW}, 1
  s_lshl_b32 s{sT1}, s{sT1}, 7
  s_add_u32 s{sT0}, s{sT0}, s{sT1}
  s_add_u32 s{sT0}, s{sT0}, {WS_OIN}
  v_and_b32 v{vT0}, 7, v2
  v_lshlrev_b32 v{vOP}, 16, v{vT0}
  v_lshrrev_b32 v{vT0}, 3, v2
  v_lshl_add_u32 v{vOP}, v{vT0}, 6, v{vOP}
  v_and_b32 v{vT0}, 1, v3
  v_lshl_add_u32 v{vOP}, v{vT0}, 5, v{vOP}
  v_lshrrev_b32 v{vT0}, 1, v3
  v_lshl_add_u32 v{vOP}, v{vT0}, 4, v{vOP}
  v_add_u32 v{vOP}, s{sT0}, v{vOP}
  s_lshl_b32 s{sT0}, s{sHG}, 14
  s_add_u32 s{sT0}, s{sT0}, s{sT2}
  s_add_u32 s{sT0}, s{sT0}, {WS_ST}
  v_lshlrev_b32 v{vSTP}, 4, v2
  v_add_u32 v{vSTP}, s{sT0}, v{vSTP}
""")
        self.mksrd(SRD_B, P_W1, 640*3456)
        self.mksrd(SRD_C, P_W2, 1728*1280)
        self.rows320_addr(vR, T+8, T+9)
        a(f"""
  v_lshrrev_b32 v{vT0}, 3, v1
  v_bfe_u32 v{vT1}, v{vT0}, 1, 1
  s_and_b32 s{sT0}, s{sW}, 1
  s_lshl_b32 s{sT0}, s{sT0}, 1
  v_or_b32 v{vT1}, s{sT0}, v{vT1}
  v_lshlrev_b32 v{vT1}, 1, v{vT1}
  v_and_b32 v{vW1}, 7, v1
  v_xor_b32 v{vW1}, v{vW1}, v{vT1}
  v_lshlrev_b32 v{vW1}, 4, v{vW1}
  v_mul_u32_u24 v{vT0}, 3456, v{vT0}
  v_add_u32 v{vW1}, v{vW1}, v{vT0}
  s_mul_i32 s{sT0}, s{sJJ}, 320
  s_add_u32 s{sT0}, s{sT0}, {A_XN}
  v_and_b32 v{vT0}, 1, v2
  v_mul_u32_u24 v{vX1}, 1280, v{vT0}
  v_lshl_add_u32 v{vX1}, v3, 4, v{vX1}
  v_add_u32 v{vX1}, s{sT0}, v{vX1}
  v_lshrrev_b32 v{vT0}, 2, v2
  v_lshl_add_u32 v{vT1}, v3, 3, v{vT0}
  v_lshlrev_b32 v{vTR1}, 7, v{vT1}
  v_mul_u32_u24 v{vTR2}, 320, v{vT1}
  v_lshrrev_b32 v{vT0}, 1, v{vT0}
  v_and_b32 v{vT1}, 1, v3
  v_lshl_or_b32 v{vT0}, v{vT1}, 1, v{vT0}
  v_lshlrev_b32 v{vT0}, 1, v{vT0}
  v_bfe_u32 v{vT1}, v2, 1, 1
  s_and_b32 s{sT0}, s{sW}, 3
  s_lshl_b32 s{sT0}, s{sT0}, 1
  v_or_b32 v{vT1}, s{sT0}, v{vT1}
  v_xor_b32 v{vT1}, v{vT1}, v{vT0}
  v_lshl_add_u32 v{vTR1}, v{vT1}, 4, v{vTR1}
  v_and_b32 v{vT0}, 1, v2
  v_lshl_add_u32 v{vTR1}, v{vT0}, 3, v{vTR1}
""")
        a(f"""
  s_lshl_b32 s{sT0}, s{sFS}, 2
  s_add_u32 s{sT0}, s{sT0}, s{sJJ}
  s_lshl_b32 s{sT0}, s{sT0}, 9
  s_lshl_b32 s{sT1}, s{sW}, 7
  s_add_u32 s{sT0}, s{sT0}, s{sT1}
  s_add_u32 s{sT0}, s{sT0}, {WS_E5}
  v_lshlrev_b32 v{vP1}, 6, v{vT0}
  v_lshl_add_u32 v{vP1}, v3, 4, v{vP1}
  v_add_u32 v{vP1}, s{sT0}, v{vP1}
  v_mul_u32_u24 v{vHR}, 160, v{vT0}
  v_lshl_add_u32 v{vHR}, v3, 4, v{vHR}
  v_add_u32 v{vHR}, {A_H}, v{vHR}
  v_mul_u32_u24 v{vH}, 160, v3
  v_lshl_add_u32 v{vH}, v2, 3, v{vH}
  v_add_u32 v{vH}, {A_H}, v{vH}
  s_mul_i32 s{sT0}, s{sJJ}, 10
  s_add_u32 s{sT0}, s{sT0}, s{sW}
  s_lshl_b32 s{sT0}, s{sT0}, 6
  s_add_u32 s{sT0}, s{sT0}, s{sFS}
  s_add_u32 s{sT0}, s{sT0}, 32
  s_lshl_b32 s{sT0}, s{sT0}, 7
  s_add_u32 s{sT0}, s{sT0}, {WS_FIN}
  v_lshlrev_b32 v{vF2}, 6, v{vT0}
  v_lshl_add_u32 v{vF2}, v3, 4, v{vF2}
  v_add_u32 v{vF2}, s{sT0}, v{vF2}
  v_and_b32 v{vT0}, 3, v2
  v_lshl_add_u32 v{vTR2}, v{vT0}, 3, v{vTR2}
  s_lshl_b32 s{sT0}, s{sW}, 5
  s_add_u32 s{sT0}, s{sT0}, {A_W2}
  v_add_u32 v{vTR2}, s{sT0}, v{vTR2}
  s_lshl_b32 s{sT0}, s{sFS}, 11
  s_add_u32 s{sT0}, s{sT0}, {WS_E5}
  v_lshrrev_b32 v{vT0}, 2, v2
  v_lshlrev_b32 v{vE5}, 7, v{vT0}
  v_lshl_add_u32 v{vE5}, v3, 6, v{vE5}
  v_and_b32 v{vT0}, 3, v2
  v_lshl_add_u32 v{vE5}, v{vT0}, 4, v{vE5}
  v_add_u32 v{vE5}, s{sT0}, v{vE5}
""")
        L5 = self.lab("noln")
        a(f"  s_cmp_lt_u32 s{sW}, 2\n  s_cbranch_scc0 {L5}")
        a("  s_waitcnt vmcnt(17)")
        self.ln_compute(vx, T + 8, A_XN)
        a.label(L5)
        qa0 = T + 8
        waits = [13, 9, 4, 2]
        for q in range(4):
            a(f"  s_waitcnt vmcnt({waits[q]}) lgkmcnt(0)\n  s_barrier")
            if q == 0: self.ts(1)
            base = vPV0 if q < 2 else vPV1
            qq = q & 1
            Lq = self.lab("noqk")
            a(f"  s_lshr_b32 s{sT0}, s{sW}, 1\n  s_cmp_eq_u32 s{sT0}, {q}\n  s_cbranch_scc0 {Lq}")
            for t in range(16):
                a(f"  ds_read_b128 {vr(fK+4*t,4)}, v{vQK} offset:{64*t}")
            a.label(Lq)
            for ct in range(4):
                for u in range(2):
                    r = fV + (ct*4 + q)*4 + 2*u
                    a(f"  ds_read_b64_tr_b16 {vr(r,2)}, v{base} offset:{(32*qq+16*u)*CKS + 32*ct}")
            if q == 1:
                a(f"  s_waitcnt vmcnt(8)\n  v_cmp_ne_u32 vcc, s{sTAG32}, v{vcf}\n  s_nop 0\n  s_cmp_eq_u64 vcc, 0\n  s_cselect_b32 s{sOK}, 1, 0")
            if q == 2:
                a(f"  buffer_load_dwordx4 {vr(qa0,4)}, v{vQL}, {srd(SRD_WS)}, 0 offen sc1")
                a(f"  buffer_load_dwordx4 {vr(qa0+4,4)}, v{vQL}, {srd(SRD_WS)}, 0 offen offset:1024 sc1")
        self.ts(2)
        Lfast, Lcf, Lqa = self.lab("qfast"), self.lab("pollCF"), self.lab("pollQ")
        a("  s_waitcnt vmcnt(0)")
        a(f"  s_cmp_eq_u32 s{sOK}, 1\n  s_cbranch_scc0 {Lcf}")
        self.markcheck([qa0+i for i in range(8)], T+16)
        a(f"  s_cbranch_vccz {Lfast}\n  s_branch {Lqa}")
        a.label(Lcf)
        a(f"  buffer_load_dword v{vcf}, v{vCF}, {srd(SRD_WS)}, 0 offen sc1")
        a("  s_waitcnt vmcnt(0)")
        a(f"  v_cmp_ne_u32 vcc, s{sTAG32}, v{vcf}")
        self.poll_tail(Lcf)
        a.label(Lqa)
        a(f"  buffer_load_dwordx4 {vr(qa0,4)}, v{vQL}, {srd(SRD_WS)}, 0 offen sc1")
        a(f"  buffer_load_dwordx4 {vr(qa0+4,4)}, v{vQL}, {srd(SRD_WS)}, 0 offen offset:1024 sc1")
        a("  s_waitcnt vmcnt(0)")
        self.markcheck([qa0+i for i in range(8)], T+16)
        self.poll_tail(Lqa)
        a.label(Lfast)
        self.ts(3)
        a(f"  ds_write_b128 v{vQW}, {vr(qa0,4)}\n  ds_write_b128 v{vQW}, {vr(qa0+4,4)} offset:{CKS}")
        a(f"""
  s_mul_i32 s{sT0}, s{sJJ}, {160*3456}
  s_lshl_b32 s{sT1}, s{sFS}, 7
  s_add_u32 s{sT0}, s{sT0}, s{sT1}
  s_mul_i32 s{sT1}, s{sW}, {8*3456}
  s_add_u32 s{sT0}, s{sT0}, s{sT1}
  s_lshl_b32 s{sT1}, s{sW}, 10
  s_add_u32 s{sT1}, s{sT1}, {A_W1}
  s_cmp_lt_u32 s{sFS}, 27
  s_cselect_b32 s{sOK}, {640*3456}, 0
  s_mov_b32 s{SRD_B+2}, s{sOK}
""")
        a("  s_waitcnt lgkmcnt(0)\n  s_barrier")
        self.ts(4)
        S = T
        for t in range(16):
            a(f"  ds_read_b128 {vr(fQ+4*t,4)}, v{vQR} offset:{64*t}")
        Lw = self.lab("w1c")
        for t in range(16):
            a(f"  s_waitcnt lgkmcnt({min(15-t, 15)})")
            c = "0" if t == 0 else vr(S, 4)
            a(f"  v_mfma_f32_16x16x32_bf16 {vr(S,4)}, {vr(fK+4*t,4)}, {vr(fQ+4*t,4)}, {c}")
            if t in (1, 3):
                self.dma(vW1, SRD_B, sT0, sT1, self.nt_w, 8192, 64*3456)
            if t == 5:
                a(f"  s_cmp_lt_u32 s{sW}, 4\n  s_cbranch_scc0 {Lw}")
                self.dma(vW1, SRD_B, sT0, sT1, self.nt_w, 0, 0)
                a.label(Lw)
        mx, tmp = T+4, T+5
        a(f"  v_max3_f32 v{mx}, v{S}, v{S+1}, v{S+2}\n  v_max_f32 v{mx}, v{mx}, v{S+3}")
        self.red([mx], "v_max_f32", tmp, ["p16", "p32"])
        a(f"  ds_write_b32 v{vMW}, v{mx}")
        a("  s_waitcnt lgkmcnt(0)\n  s_barrier")
        m8 = T + 8
        a(f"  ds_read_b128 {vr(m8,4)}, v{vMR}\n  ds_read_b128 {vr(m8+4,4)}, v{vMR} offset:16")
        a("  s_waitcnt lgkmcnt(0)")
        a(f"  v_max3_f32 v{mx}, v{m8}, v{m8+1}, v{m8+2}\n  v_max3_f32 v{tmp}, v{m8+3}, v{m8+4}, v{m8+5}")
        a(f"  v_max3_f32 v{mx}, v{mx}, v{m8+6}, v{m8+7}\n  v_max_f32 v{mx}, v{mx}, v{tmp}")
        for r in range(4):
            a(f"  v_sub_f32 v{S+r}, v{S+r}, v{mx}")
        for r in range(4):
            a(f"  v_exp_f32 v{S+r}, v{S+r}")
        pk = T + 6
        a(f"  v_cvt_pk_bf16_f32 v{pk}, v{S}, v{S+1}\n  v_cvt_pk_bf16_f32 v{pk+1}, v{S+2}, v{S+3}")
        a(f"  ds_write_b64 v{vPW}, {vr(pk,2)}")
        ls = T + 16
        a(f"  v_lshlrev_b32 v{S}, 16, v{pk}\n  v_and_b32 v{S+1}, 0xffff0000, v{pk}")
        a(f"  v_lshlrev_b32 v{S+2}, 16, v{pk+1}\n  v_and_b32 v{S+3}, 0xffff0000, v{pk+1}")
        a(f"  v_add_f32 v{ls}, v{S}, v{S+1}\n  v_add_f32 v{S+2}, v{S+2}, v{S+3}\n  v_add_f32 v{ls}, v{ls}, v{S+2}")
        self.red([ls], "v_add_f32", tmp, ["p16", "p32"])
        a(f"  ds_write_b32 v{vMW}, v{ls} offset:{A_L - A_M}")
        a("  s_waitcnt lgkmcnt(0)\n  s_barrier")
        self.ts(5)
        pf = fQ
        l8 = T + 8
        a(f"  ds_read_b128 {vr(pf,4)}, v{vPR}")
        a(f"  ds_read_b128 {vr(l8,4)}, v{vMR} offset:{A_L - A_M}\n  ds_read_b128 {vr(l8+4,4)}, v{vMR} offset:{A_L - A_M + 16}")
        for s in range(1, 4):
            a(f"  ds_read_b128 {vr(pf+4*s,4)}, v{vPR} offset:{1024*s}")
        acc = fQ + 16
        Ls = self.lab("nostats")
        for s in range(4):
            a(f"  s_waitcnt lgkmcnt({[5,2,1,0][s]})")
            for ct in range(4):
                c = "0" if s == 0 else vr(acc+4*ct, 4)
                a(f"  v_mfma_f32_16x16x32_bf16 {vr(acc+4*ct,4)}, {vr(fV+(ct*4+s)*4,4)}, {vr(pf+4*s,4)}, {c}")
            if s == 0:
                a(f"  s_cmp_eq_u32 s{sW}, 0\n  s_cbranch_scc0 {Ls}")
                a("  s_waitcnt lgkmcnt(3)")
                a(f"  v_add_f32 v{l8}, v{l8}, v{l8+1}\n  v_add_f32 v{l8+2}, v{l8+2}, v{l8+3}\n  v_add_f32 v{l8+4}, v{l8+4}, v{l8+5}\n  v_add_f32 v{l8+6}, v{l8+6}, v{l8+7}")
                a(f"  v_add_f32 v{l8}, v{l8}, v{l8+2}\n  v_add_f32 v{l8+4}, v{l8+4}, v{l8+6}\n  v_add_f32 v{l8+1}, v{l8}, v{l8+4}")
                a(f"  v_mov_b32 v{l8}, v{mx}\n  v_mov_b32 v{l8+2}, s{sTAG32}\n  v_mov_b32 v{l8+3}, 0")
                a(f"  s_mov_b64 exec, 0xffff")
                a(f"  buffer_store_dwordx4 {vr(l8,4)}, v{vSTP}, {srd(SRD_WS)}, 0 offen sc1")
                a("  s_mov_b64 exec, -1")
                a.label(Ls)
        pkd, tc = T + 16, T
        for pp in range(2):
            for u in range(2):
                ac = acc + 4*(2*pp+u)
                a(f"  v_cvt_pk_bf16_f32 v{pkd+4*pp+2*u}, v{ac}, v{ac+1}\n  v_cvt_pk_bf16_f32 v{pkd+4*pp+2*u+1}, v{ac+2}, v{ac+3}")
        for pp in range(2):
            b0 = pkd + 4*pp
            a(f"  v_permlane16_swap_b32 v{b0}, v{b0+2}\n  v_permlane16_swap_b32 v{b0+1}, v{b0+3}")
        A_, B_ = pkd, pkd + 4
        for i in range(4): a(f"  v_mov_b32 v{tc+i}, v{A_+i}")
        for i in range(4): a(f"  v_mov_b32_dpp v{A_+i}, v{B_+i} row_ror:8 row_mask:0xf bank_mask:0xc")
        a(f"  buffer_store_dwordx4 {vr(A_,4)}, v{vOP}, {srd(SRD_WS)}, 0 offen sc1")
        for i in range(4): a(f"  v_mov_b32_dpp v{B_+i}, v{tc+i} row_ror:8 row_mask:0xf bank_mask:0x3")
        a(f"  s_mov_b32 s{sT2}, {8*4*OIN_STRIDE}")
        a(f"  buffer_store_dwordx4 {vr(B_,4)}, v{vOP}, {srd(SRD_WS)}, s{sT2} offen sc1")
        self.ts(6)
        Lend = self.lab("noffn")
        a(f"  s_cmp_lt_u32 s{sFS}, 27\n  s_cbranch_scc0 {Lend}")
        a("  s_waitcnt vmcnt(2)\n  s_barrier")
        self.ts(7)
        F = fQ
        L1f = self.lab("noffn1")
        a(f"  s_cmp_lt_u32 s{sW}, 4\n  s_cbranch_scc0 {L1f}")
        a(f"""
  s_lshl_b32 s{sT0}, s{sFS}, 6
  s_lshl_b32 s{sT1}, s{sW}, 4
  s_add_u32 s{sT0}, s{sT0}, s{sT1}
  s_mul_i32 s{sT0}, s{sT0}, 1280
  s_mul_i32 s{sT1}, s{sJJ}, 320
  s_add_u32 s{sT0}, s{sT0}, s{sT1}
  s_mul_i32 s{sT1}, s{sW}, 5120
  s_add_u32 s{sT1}, s{sT1}, {A_W2}
""")
        xf, af, ac = F, F+20, F+40
        for s in range(5):
            a(f"  ds_read_b128 {vr(xf+4*s,4)}, v{vX1} offset:{64*s}")
            a(f"  ds_read_b64_tr_b16 {vr(af+4*s,2)}, v{vTR1} offset:{A_W1 + 32*s*128}")
            a(f"  ds_read_b64_tr_b16 {vr(af+4*s+2,2)}, v{vTR1} offset:{A_W1 + (32*s+4)*128}")
        for k in range(5):
            self.dma(vR+k, SRD_C, sT0, sT1, self.nt_w, 1024, 0)
        for s in range(5):
            a(f"  s_waitcnt lgkmcnt({12-3*s})")
            c = "0" if s == 0 else vr(ac, 4)
            a(f"  v_mfma_f32_16x16x32_bf16 {vr(ac,4)}, {vr(af+4*s,4)}, {vr(xf+4*s,4)}, {c}")
        self.publish_line(ac, vP1, vTAG, "0")
        a.label(L1f)
        Lh = self.lab("noh")
        a(f"  s_cmp_eq_u32 s{sW}, 4\n  s_cbranch_scc0 {Lh}")
        a(f"  s_mov_b64 exec, s[{sM32}:{sM32+1}]")
        Lp = self.lab("pollH")
        a.label(Lp)
        for k in range(4):
            a(f"  buffer_load_dwordx4 {vr(F+4*k,4)}, v{vE5}, {srd(SRD_WS)}, 0 offen offset:{512*k} sc1")
        a("  s_waitcnt vmcnt(0)")
        self.tagcheck([F+i for i in range(16)], F+16, vTAG)
        self.poll_tail(Lp)
        for r in range(4):
            a(f"  v_add_f32 v{F+r}, v{F+r}, v{F+4+r}\n  v_add_f32 v{F+8+r}, v{F+8+r}, v{F+12+r}\n  v_add_f32 v{F+r}, v{F+r}, v{F+8+r}")
            self.rb(F+r, F+r)
            self.silu(F+r, F+r, F+16)
        a(f"  v_cvt_pk_bf16_f32 v{F}, v{F}, v{F+1}\n  v_cvt_pk_bf16_f32 v{F+1}, v{F+2}, v{F+3}")
        a(f"  ds_write_b64 v{vH}, {vr(F,2)}")
        a("  s_mov_b64 exec, -1")
        a.label(Lh)
        a("  s_waitcnt vmcnt(0) lgkmcnt(0)\n  s_barrier")
        f2a, f2b = F+48, F+56
        for s in range(2):
            a(f"  ds_read_b64_tr_b16 {vr(f2a+4*s,2)}, v{vTR2} offset:{32*s*320}")
            a(f"  ds_read_b64_tr_b16 {vr(f2a+4*s+2,2)}, v{vTR2} offset:{(32*s+4)*320}")
        for s in range(2):
            a(f"  ds_read_b64_tr_b16 {vr(f2b+4*s,2)}, v{vTR2} offset:{32*s*320+256}")
            a(f"  ds_read_b64_tr_b16 {vr(f2b+4*s+2,2)}, v{vTR2} offset:{(32*s+4)*320+256}")
        hf, ac, acb = F, F+8, F+12
        for t in range(2):
            a(f"  ds_read_b128 {vr(hf+4*t,4)}, v{vHR} offset:{64*t}")
        a("  s_waitcnt lgkmcnt(0)")
        for t in range(2):
            c = "0" if t == 0 else vr(ac, 4)
            a(f"  v_mfma_f32_16x16x32_bf16 {vr(ac,4)}, {vr(f2a+4*t,4)}, {vr(hf+4*t,4)}, {c}")
            c = "0" if t == 0 else vr(acb, 4)
            a(f"  v_mfma_f32_16x16x32_bf16 {vr(acb,4)}, {vr(f2b+4*t,4)}, {vr(hf+4*t,4)}, {c}")
        self.publish_line(ac, vF2, vTAG, "0")
        L2t = self.lab("no2t")
        a(f"  s_cmp_lt_u32 s{sW}, 2\n  s_cbranch_scc0 {L2t}")
        a(f"  s_mov_b32 s{sT0}, {8*64*128}")
        self.publish_line(acb, vF2, vTAG, f"s{sT0}")
        a.label(L2t)
        self.ts(8)
        a.label(Lend)
        self.ts_flush(0)
        a("  s_endpgm")

    def build(self):
        self.prologue()
        self.role_w()
        self.role_a()
        self.a.label("L_end")
        self.a("  s_endpgm")
        body, n = hazard_pass(self.a.text())
        hdr = open("cdna_kernels/" + NAME + ".s.ref").read().split("\n")
        head = []
        for ln in hdr:
            if ln.startswith("; @launch"):
                head.append(f"; @launch grid=(256,1,1) block=(512,1,1) lds={LDS_BYTES}")
                break
            if ln.startswith("; Override") or ln.startswith("; grid="):
                continue
            head.append(ln)
        txt = "\n".join(head) + "\n"
        txt += f""".amdgcn_target "amdgcn-amd-amdhsa--gfx950"
.text
.globl {NAME}_kernel
.p2align 8
.type {NAME}_kernel,@function
{NAME}_kernel:
{body}
.section .rodata,"a"
.p2align 6
.amdhsa_kernel {NAME}_kernel
  .amdhsa_next_free_vgpr 256
  .amdhsa_next_free_sgpr 102
  .amdhsa_accum_offset 256
  .amdhsa_group_segment_fixed_size 0
  .amdhsa_kernarg_size 96
  .amdhsa_user_sgpr_count 2
  .amdhsa_user_sgpr_kernarg_segment_ptr 1
  .amdhsa_system_sgpr_workgroup_id_x 1
.end_amdhsa_kernel
"""
        return txt

if __name__ == "__main__":
    import argparse
    ap = argparse.ArgumentParser()
    ap.add_argument("-o", default="cdna_kernels/" + NAME + ".s")
    ap.add_argument("--ts", action="store_true")
    ap.add_argument("--tsdbg", action="store_true")
    ap.add_argument("--spin", type=int, default=None)
    ap.add_argument("--ntw", default="nt")
    ap.add_argument("--ntc", default="nt")
    ap.add_argument("--adelay", action="store_true")
    args = ap.parse_args()
    g = Gen(ts=args.ts, ts_dbg=args.tsdbg, spin=args.spin, nt_w=args.ntw, nt_ckv=args.ntc, adelay=args.adelay)
    t = g.build()
    open(args.o, "w").write(t)
    print("wrote", args.o, len(t), "bytes")
```
